```python
import torch

def _softmax(x, axis=-1):
    return torch.softmax(x, dim=axis)
def _gelu(x):
    return torch.nn.functional.gelu(x, approximate="tanh")
def _silu(x):
    return torch.nn.functional.silu(x)
def _sigmoid(x):
    return torch.sigmoid(x)
def _layernorm(x, axis=-1, eps=1e-5):
    m = x.mean(dim=axis, keepdim=True)
    v = x.var(dim=axis, keepdim=True, unbiased=False)
    return (x - m) / torch.sqrt(v + eps)
def _scatter_add(tgt, idx, src, axis=0):
    return tgt.clone().index_add_(axis, idx, src)
def _segment_sum(src, seg, n):
    out = torch.zeros((n,) + src.shape[1:], dtype=src.dtype)
    return out.index_add_(0, seg, src)
def _pad(x, pw):
    flat = tuple(v for pair in reversed(pw) for v in pair)
    return torch.nn.functional.pad(x, flat)

kernel_name = 'gated_mix__spectral_gfnet__glu_gated_geglu__prompt'

def setup_inputs():

    _w = (lambda a: (lambda t: t.to(torch.bfloat16) if t.is_floating_point() else t)(torch.as_tensor(a)))
    def _A_setup():
        B, S, D = 1, 2048, 448
        Df = D // 2 + 1
        return {
            "x": _w((lambda *s: torch.randn(*s, dtype=torch.bfloat16) * 0.05)(B, S, D)),
            "w_r": _w((lambda *s: torch.randn(*s, dtype=torch.bfloat16) * 0.05)(S, Df) * 0.02),
            "w_i": _w((lambda *s: torch.randn(*s, dtype=torch.bfloat16) * 0.05)(S, Df) * 0.02),
        }
    _A_in = _A_setup()

    def _B_setup():
        B, S, Dm, Df = 1, 2048, 448, 1792
        return {
            "x": _w((lambda *s: torch.randn(*s, dtype=torch.bfloat16) * 0.05)(B, S, Dm)),
            "w_gate": _w((lambda *s: torch.randn(*s, dtype=torch.bfloat16) * 0.2)(Dm, Df) * (Dm ** -0.5)),
            "w_up": _w((lambda *s: torch.randn(*s, dtype=torch.bfloat16) * 0.2)(Dm, Df) * (Dm ** -0.5)),
            "w_down": _w((lambda *s: torch.randn(*s, dtype=torch.bfloat16) * 0.2)(Df, Dm) * (Df ** -0.5)),
        }
    _B_in = _B_setup()

    return {
        "A_x": _A_in["x"],
        "A_w_r": _A_in["w_r"],
        "A_w_i": _A_in["w_i"],
        "B_x": _B_in["x"],
        "B_w_gate": _B_in["w_gate"],
        "B_w_up": _B_in["w_up"],
        "B_w_down": _B_in["w_down"],
        "gate_w": _w((lambda *s: torch.randn(*s, dtype=torch.bfloat16) * 0.05)(448) * 16.0),
    }

def reference(A_x, A_w_r, A_w_i, B_x, B_w_gate, B_w_up, B_w_down, gate_w):
    def _A_ref(x, w_r, w_i):
        B, S, D = x.shape
        X = (lambda x, axes=(-2,-1): torch.fft.rfft2(x.float(), dim=axes))(x, axes=(-2, -1))
        W = w_r + 1j * w_i
        X = X * W
        y = (lambda x, s, axes=(-2,-1): torch.fft.irfft2(x, s=s, dim=axes).to(torch.bfloat16))(X, (S, D), axes=(-2, -1))
        return y

    def _B_ref(x, w_gate, w_up, w_down):
        g = torch.einsum("bsd,df->bsf", x, w_gate)
        u = torch.einsum("bsd,df->bsf", x, w_up)
        h = _gelu(g) * u
        return torch.einsum("bsf,fd->bsd", h, w_down)

    x = A_x
    g = _sigmoid((x * gate_w).sum(-1, keepdims=True))
    a = _A_ref(x, A_w_r, A_w_i)
    b = _B_ref(x, B_w_gate, B_w_up, B_w_down)
    return g * a + (1 - g) * b
```

```python
import math, struct, sys
import numpy as np

NAME = 'gated_mix__spectral_gfnet__glu_gated_geglu__prompt'
S, D, F = 2048, 448, 1792
WS_H    = 0x0000000
WS_X1T  = 0x0800000
WS_WT   = 0x0C00000
WS_GATE = 0x0E00000
WS_Y1T  = 0x0F00000
WS_B    = 0x1100000

def f32bits(x):
    return struct.unpack('<I', struct.pack('<f', x))[0]

def bf16bits(x):
    u = f32bits(np.float32(x))
    r = (u + 0x7FFF + ((u >> 16) & 1)) >> 16
    return r & 0xFFFF

class Asm:
    def __init__(self):
        self.L = []
    def __call__(self, s):
        self.L.append('  ' + s)
    def label(self, s):
        self.L.append(s + ':')
    def raw(self, s):
        self.L.append(s)
    def c(self, s):
        self.L.append('  ; ' + s)

def vr(b, n=1):
    return f'v{b}' if n == 1 else f'v[{b}:{b+n-1}]'
def sr(b, n=1):
    return f's{b}' if n == 1 else f's[{b}:{b+n-1}]'

def srd(a, d, lo, hi, nbytes):
    a(f's_mov_b32 s{d}, s{lo}')
    a(f's_and_b32 s{d+1}, s{hi}, 0xffff')
    a(f's_mov_b32 s{d+2}, {nbytes}')
    a(f's_mov_b32 s{d+3}, 0x00020000')

def srd_off(a, d, lo, hi, off, nbytes):
    a(f's_add_u32 s{d}, s{lo}, {off}')
    a(f's_addc_u32 s{d+1}, s{hi}, 0')
    a(f's_and_b32 s{d+1}, s{d+1}, 0xffff')
    a(f's_mov_b32 s{d+2}, {nbytes}')
    a(f's_mov_b32 s{d+3}, 0x00020000')

def kernel_header(a, name):
    a.raw('.text')
    a.raw(f'.globl {name}')
    a.raw('.p2align 8')
    a.raw(f'.type {name},@function')
    a.label(name)

def kernel_desc(a, name, vgpr, sgpr=102):
    acc = (vgpr + 3) // 4 * 4
    a.raw('.section .rodata,"a"')
    a.raw('.p2align 6')
    a.raw(f'.amdhsa_kernel {name}')
    a.raw(f'  .amdhsa_next_free_vgpr {vgpr}')
    a.raw(f'  .amdhsa_next_free_sgpr {sgpr}')
    a.raw(f'  .amdhsa_accum_offset {acc}')
    a.raw('  .amdhsa_group_segment_fixed_size 0')
    a.raw('  .amdhsa_kernarg_size 88')
    a.raw('  .amdhsa_user_sgpr_count 2')
    a.raw('  .amdhsa_user_sgpr_kernarg_segment_ptr 1')
    a.raw('  .amdhsa_system_sgpr_workgroup_id_x 1')
    a.raw('  .amdhsa_float_denorm_mode_32 3')
    a.raw('.end_amdhsa_kernel')

STAMP = False
STAMP2 = False
def stamp(a, idx):
    if STAMP:
        a(f's_memtime s[{76+2*idx}:{77+2*idx}]')
def stamp_flush(a, n, sWSlo, sW, scr_v, srd_s, extra=None):
    if not STAMP: return
    a('s_waitcnt lgkmcnt(0)')
    srd_off(a, srd_s, sWSlo, sWSlo+1, 0x2000000, 0x100000)
    a(f's_lshl_b32 s74, s2, 3')
    a(f's_add_u32 s74, s74, s{sW}')
    a(f's_lshl_b32 s74, s74, 6')
    a(f'v_mov_b32 v{scr_v}, s74')
    a('s_mov_b64 exec, 1')
    for i in range(n):
        a(f'v_mov_b32 v{scr_v+1}, s{76+2*i}')
        a(f'buffer_store_dword v{scr_v+1}, v{scr_v}, s[{srd_s}:{srd_s+3}], 0 offen offset:{4*i}')
        a('s_nop 1')
    if extra is not None:
        a(f'v_mov_b32 v{scr_v+1}, s{extra}')
        a(f'buffer_store_dword v{scr_v+1}, v{scr_v}, s[{srd_s}:{srd_s+3}], 0 offen offset:60')
    a('s_mov_b64 exec, -1')
LOG2E = 1.4426950408889634
GC0 = -2.0 * LOG2E * math.sqrt(2.0 / math.pi)
GC1 = GC0 * 0.044715

def round_bf16_pair(a, d0, d1, s0, s1, tmp):
    a(f'v_cvt_pk_bf16_f32 v{tmp}, v{s0}, v{s1}')
    a(f'v_lshlrev_b32 v{d0}, 16, v{tmp}')
    a(f'v_and_b32 v{d1}, 0xffff0000, v{tmp}')

def gen_k1(a):
    name = 'k1_kernel'
    kernel_header(a, name)
    sX, sWg, sWu, sWr, sWi, sGW, sWS = 4, 6, 8, 10, 12, 14, 16
    SA, SBG, SBU, SO = 20, 24, 28, 32
    SWR, SWI, SWT, SGWs, SGATE = 36, 40, 44, 48, 52
    sCB, sRB, sW, sStride, sKB, sTmp, sTmp2, sIsD = 56, 57, 58, 59, 60, 61, 62, 63
    sM0A, sM0B = 64, 65
    sOffA, sOffB = 66, 67
    sMt = 68
    sC = 98
    a('s_cmp_ge_u32 s2, 256')
    a('s_cbranch_scc1 K1_END')
    stamp(a, 0)
    if STAMP: a('s_memrealtime s[100:101]')
    a('s_load_dwordx2 s[4:5], s[0:1], 0')
    a('s_load_dwordx2 s[6:7], s[0:1], 32')
    a('s_load_dwordx2 s[8:9], s[0:1], 40')
    a('s_load_dwordx2 s[10:11], s[0:1], 8')
    a('s_load_dwordx2 s[12:13], s[0:1], 16')
    a('s_load_dwordx2 s[14:15], s[0:1], 56')
    a('s_load_dwordx2 s[16:17], s[0:1], 80')
    a('v_lshrrev_b32 v1, 6, v0')
    a('s_nop 0')
    a(f'v_readfirstlane_b32 s{sW}, v1')
    sG, sJ = 74, 75
    a(f's_and_b32 s{sRB}, s2, 1')
    a(f's_lshl_b32 s{sRB}, s{sRB}, 2')
    a(f's_lshr_b32 s{sJ}, s2, 3')
    a(f's_and_b32 s{sTmp}, s{sJ}, 3')
    a(f's_add_u32 s{sRB}, s{sRB}, s{sTmp}')
    a(f's_bfe_u32 s{sG}, s2, 0x20001')
    a(f's_lshr_b32 s{sTmp2}, s2, 5')
    a(f's_getpc_b64 s[18:19]')
    a(f's_add_u32 s18, s18, tblF@rel32@lo+4')
    a(f's_addc_u32 s19, s19, tblF@rel32@hi+12')
    a('s_waitcnt lgkmcnt(0)')
    if STAMP2: stamp(a, 3)
    srd(a, SA, sX, sX + 1, S * D * 2)
    srd(a, SWR, sWr, sWr + 1, S * 225 * 2)
    srd(a, SWI, sWi, sWi + 1, S * 225 * 2)
    srd(a, SGWs, sGW, sGW + 1, D * 2)
    srd_off(a, SWT, sWS, sWS + 1, WS_WT, 225 * 8192)
    srd_off(a, SGATE, sWS, sWS + 1, WS_GATE, 2048 * 4)
    sRot = 73
    a(f's_and_b32 s{sTmp}, s{sJ}, 3')
    a(f's_lshl_b32 s{sTmp}, s{sTmp}, 1')
    a(f's_add_u32 s{sRot}, s{sTmp}, s{sTmp2}')
    a(f's_cmp_ge_u32 s{sRot}, 7')
    a(f's_cselect_b32 s{sTmp}, 7, 0')
    a(f's_sub_u32 s{sRot}, s{sRot}, s{sTmp}')
    a(f's_cmp_ge_u32 s{sTmp2}, 7')
    a(f's_cselect_b32 s{sIsD}, 1, 0')
    a('s_cbranch_scc1 K1_SETUP_DFT')
    a(f's_mul_i32 s{sCB}, s{sG}, 7')
    a(f's_add_u32 s{sCB}, s{sCB}, s{sTmp2}')
    a(f's_lshl_b32 s{sTmp}, s{sCB}, 7')
    a(f's_add_u32 s{SBG}, s{sWg}, s{sTmp}')
    a(f's_addc_u32 s{SBG+1}, s{sWg+1}, 0')
    a(f's_and_b32 s{SBG+1}, s{SBG+1}, 0xffff')
    a(f's_sub_u32 s{SBG+2}, {D*F*2}, s{sTmp}')
    a(f's_mov_b32 s{SBG+3}, 0x00020000')
    a(f's_add_u32 s{SBU}, s{sWu}, s{sTmp}')
    a(f's_addc_u32 s{SBU+1}, s{sWu+1}, 0')
    a(f's_and_b32 s{SBU+1}, s{SBU+1}, 0xffff')
    a(f's_sub_u32 s{SBU+2}, {D*F*2}, s{sTmp}')
    a(f's_mov_b32 s{SBU+3}, 0x00020000')
    a(f's_mov_b32 s{sStride}, 3584')
    srd_off(a, SO, sWS, sWS + 1, WS_H, S * F * 2)
    a('s_branch K1_SETUP_DONE')
    a.label('K1_SETUP_DFT')
    a(f's_mov_b32 s{sCB}, s{sG}')
    a(f's_lshl_b32 s{sTmp}, s{sCB}, 8')
    a(f's_add_u32 s{SBG}, s18, s{sTmp}')
    a(f's_addc_u32 s{SBG+1}, s19, 0')
    a(f's_and_b32 s{SBG+1}, s{SBG+1}, 0xffff')
    a(f's_sub_u32 s{SBG+2}, {448*1024}, s{sTmp}')
    a(f's_mov_b32 s{SBG+3}, 0x00020000')
    a(f's_add_u32 s{sTmp}, s{sTmp}, 128')
    a(f's_add_u32 s{SBU}, s18, s{sTmp}')
    a(f's_addc_u32 s{SBU+1}, s19, 0')
    a(f's_and_b32 s{SBU+1}, s{SBU+1}, 0xffff')
    a(f's_sub_u32 s{SBU+2}, {448*1024}, s{sTmp}')
    a(f's_mov_b32 s{SBU+3}, 0x00020000')
    a(f's_mov_b32 s{sStride}, 1024')
    srd_off(a, SO, sWS, sWS + 1, WS_X1T, 448 * 8192)
    a.label('K1_SETUP_DONE')

    vL = 1
    vAd = 2
    vBd = 6
    vAr = 7
    vBr = 11
    vT = 13
    vP = 32
    ACC = 64
    AF = [128, 144]
    BF = [160, 176]
    t0, t1, t2 = vT, vT + 1, vT + 2
    a(f'v_and_b32 v{vL}, 63, v0')
    a(f'v_lshrrev_b32 v{t0}, 3, v{vL}')
    a(f's_lshl_b32 s{sTmp}, s{sRB}, 8')
    a(f's_lshl_b32 s{sTmp2}, s{sW}, 5')
    a(f's_add_u32 s{sTmp}, s{sTmp}, s{sTmp2}')
    a(f'v_add_u32 v{t0}, s{sTmp}, v{t0}')
    a(f'v_mul_u32_u24 v{t0}, 896, v{t0}')
    a(f'v_lshrrev_b32 v{t1}, 4, v{vL}')
    a(f'v_and_b32 v{t2}, 7, v{vL}')
    a(f'v_xor_b32 v{t2}, v{t2}, v{t1}')
    a(f'v_xor_b32 v{t1}, 4, v{t2}')
    for j in range(4):
        a(f'v_lshl_add_u32 v{vAd+j}, v{t1 if j & 1 else t2}, 4, v{t0}')
        if j:
            a(f'v_add_u32 v{vAd+j}, {j*8*896}, v{vAd+j}')
    a(f'v_lshrrev_b32 v{t0}, 3, v{vL}')
    a(f's_lshl_b32 s{sTmp}, s{sW}, 3')
    a(f'v_add_u32 v{t0}, s{sTmp}, v{t0}')
    a(f'v_mul_lo_u32 v{t0}, v{t0}, s{sStride}')
    a(f'v_bfe_u32 v{t1}, v{vL}, 4, 1')
    a(f's_and_b32 s{sTmp2}, s{sW}, 1')
    a(f's_lshl_b32 s{sTmp2}, s{sTmp2}, 1')
    a(f'v_or_b32 v{t1}, s{sTmp2}, v{t1}')
    a(f'v_bfe_u32 v{t2}, v{vL}, 1, 2')
    a(f'v_xor_b32 v{t2}, v{t2}, v{t1}')
    a(f'v_lshl_add_u32 v{t0}, v{t2}, 5, v{t0}')
    a(f'v_and_b32 v{t2}, 1, v{vL}')
    a(f'v_lshl_add_u32 v{vBd}, v{t2}, 4, v{t0}')
    a(f's_lshl_b32 s{sM0A}, s{sW}, 12')
    a(f's_lshl_b32 s{sM0B}, s{sW}, 10')
    a(f's_add_u32 s{sM0B}, s{sM0B}, 98304')

    def stage_pieces(step):
        slot = step % 3
        def setup():
            a(f's_add_u32 s{sOffA}, s{sRot}, {step}')
            a(f's_cmp_ge_u32 s{sOffA}, 7')
            a(f's_cselect_b32 s{sOffB}, 7, 0')
            a(f's_sub_u32 s{sOffA}, s{sOffA}, s{sOffB}')
            a(f's_lshl_b32 s{sOffB}, s{sOffA}, 6')
            a(f's_mul_i32 s{sOffB}, s{sOffB}, s{sStride}')
            a(f's_lshl_b32 s{sOffA}, s{sOffA}, 7')
        def pa(j):
            def f():
                a(f's_add_u32 m0, s{sM0A}, {slot*32768 + j*1024}')
                a('s_nop 0')
                a(f'buffer_load_dwordx4 v{vAd+j}, s[{SA}:{SA+3}], s{sOffA} offen lds')
            return f
        def pb(half):
            def f():
                a(f's_add_u32 m0, s{sM0B}, {slot*16384 + half*8192}')
                a('s_nop 0')
                sb = SBU if half else SBG
                a(f'buffer_load_dwordx4 v{vBd}, s[{sb}:{sb+3}], s{sOffB} offen lds')
            return f
        return [setup] + [pa(j) for j in range(4)] + [pb(0), pb(1)]
    def issue_stage(step):
        for f in stage_pieces(step):
            f()

    if STAMP2: stamp(a, 4)
    for st in range(2):
        issue_stage(st)
        if STAMP2: stamp(a, 5+st)
    vWTo = vT + 6
    vGo = vT + 7
    NPL = 10
    NPS = 5
    def prep_loads():
        a(f's_lshl_b32 s{sTmp}, s2, 3')
        a(f's_add_u32 s{sTmp}, s{sTmp}, s{sW}')
        a(f's_mul_i32 s{sTmp2}, s{sTmp}, 896')
        a(f'v_lshlrev_b32 v{t1}, 4, v{vL}')
        a(f'v_mov_b32 v{t2}, 0x7f000000')
        a(f'v_cmp_gt_u32 vcc, 56, v{vL}')
        a('s_nop 1')
        a(f'v_cndmask_b32 v{t2}, v{t2}, v{t1}, vcc')
        a(f'buffer_load_dwordx4 {vr(vP+16,4)}, v{t2}, s[{SA}:{SA+3}], s{sTmp2} offen')
        a(f'buffer_load_dwordx4 {vr(vP+20,4)}, v{t1}, s[{SGWs}:{SGWs+3}], 0 offen')
        a(f's_lshl_b32 s{sTmp}, s{sTmp}, 2')
        a(f'v_mov_b32 v{vGo}, s{sTmp}')
        a(f's_lshr_b32 s{sTmp}, s2, 5')
        a(f's_bfe_u32 s{sTmp2}, s2, 0x30002')
        a(f's_lshl_b32 s{sTmp2}, s{sTmp2}, 3')
        a(f's_add_u32 s{sTmp}, s{sTmp}, s{sTmp2}')
        a(f's_and_b32 s{sTmp2}, s2, 3')
        a(f's_lshl_b32 s{sTmp2}, s{sTmp2}, 7')
        a(f's_add_u32 s{sTmp}, s{sTmp}, s{sTmp2}')
        a(f's_and_b32 s{sTmp2}, s{sW}, 1')
        a(f's_lshl_b32 s{sTmp2}, s{sTmp2}, 6')
        a(f's_add_u32 s{sTmp}, s{sTmp}, s{sTmp2}')
        a(f's_mul_i32 s{sTmp}, s{sTmp}, 450')
        a(f'v_lshlrev_b32 v{t1}, 3, v{vL}')
        for j in range(4):
            a(f's_add_u32 s{sMt+j}, s{sTmp}, {j*512*450}')
        for j in range(4):
            a(f'buffer_load_dwordx2 {vr(vP+2*j,2)}, v{t1}, s[{SWR}:{SWR+3}], s{sMt+j} offen')
            a(f'buffer_load_dwordx2 {vr(vP+8+2*j,2)}, v{t1}, s[{SWI}:{SWI+3}], s{sMt+j} offen')
        a(f'v_lshlrev_b32 v{vWTo}, 15, v{vL}')
        a(f's_lshl_b32 s{sTmp}, s2, 5')
        a(f's_lshl_b32 s{sTmp2}, s{sW}, 4')
        a(f's_add_u32 s{sTmp}, s{sTmp}, s{sTmp2}')
        a(f's_cmp_ge_u32 s{sW}, 2')
        a(f's_cselect_b32 s{sTmp}, 0x7f000000, s{sTmp}')
        a(f'v_add_u32 v{vWTo}, s{sTmp}, v{vWTo}')
    if STAMP2: stamp(a, 8)
    a(f'v_and_b32 v{t0}, 15, v{vL}')
    a(f's_lshr_b32 s{sTmp}, s{sW}, 1')
    a(f's_lshl_b32 s{sTmp}, s{sTmp}, 6')
    a(f'v_add_u32 v{t1}, s{sTmp}, v{t0}')
    a(f'v_lshlrev_b32 v{t1}, 7, v{t1}')
    a(f'v_lshrrev_b32 v{t0}, 1, v{t0}')
    a(f'v_lshrrev_b32 v{t2}, 4, v{vL}')
    a(f'v_xor_b32 v{t0}, v{t0}, v{t2}')
    a(f'v_lshl_add_u32 v{vAr}, v{t0}, 4, v{t1}')
    a(f'v_xor_b32 v{vAr+1}, 64, v{vAr}')
    a(f'v_add_u32 v{vAr+2}, 0x10000, v{vAr}')
    a(f'v_add_u32 v{vAr+3}, 0x10000, v{vAr+1}')
    a(f'v_bfe_u32 v{t0}, v{vL}, 2, 2')
    a(f'v_lshl_add_u32 v{t1}, v{t2}, 3, v{t0}')
    a(f'v_lshlrev_b32 v{t1}, 7, v{t1}')
    a(f'v_add_u32 v{t1}, 98304, v{t1}')
    a(f'v_and_b32 v{vT+5}, 3, v{vL}')
    a(f'v_lshl_add_u32 v{t1}, v{vT+5}, 3, v{t1}')
    a(f'v_lshrrev_b32 v{t0}, 1, v{t0}')
    a(f'v_and_b32 v{t2}, 1, v{t2}')
    a(f'v_lshl_or_b32 v{t0}, v{t2}, 1, v{t0}')
    a(f's_and_b32 s{sTmp}, s{sW}, 1')
    a(f's_lshl_b32 s{sTmp}, s{sTmp}, 1')
    a(f'v_xor_b32 v{t0}, s{sTmp}, v{t0}')
    a(f'v_lshl_add_u32 v{vBr}, v{t0}, 5, v{t1}')
    a(f'v_xor_b32 v{vBr+1}, 32, v{vBr}')
    for i in range(64):
        a(f'v_mov_b32 v{ACC+i}, 0')

    def prep_compute():
        a(f's_mov_b32 s{sTmp}, 0x05040100')
        a(f's_mov_b32 s{sTmp2}, 0x07060302')
        O = vP + 24
        for kk in range(4):
            o = O + (kk & 1) * 4
            for j in range(4):
                sel = sTmp2 if (kk & 1) else sTmp
                a(f'v_perm_b32 v{o+j}, v{vP+8+2*j+(kk>>1)}, v{vP+2*j+(kk>>1)}, s{sel}')
            a(f's_mov_b32 s{sMt}, {kk*8192}')
            a(f'buffer_store_dwordx4 {vr(o,4)}, v{vWTo}, s[{SWT}:{SWT+3}], s{sMt} offen')
            a('s_nop 1')
        for j in range(4):
            a(f'v_lshlrev_b32 v{vP+8+2*j}, 16, v{vP+16+j}')
            a(f'v_and_b32 v{vP+9+2*j}, 0xffff0000, v{vP+16+j}')
            a(f'v_lshlrev_b32 v{vP+2*j}, 16, v{vP+20+j}')
            a(f'v_and_b32 v{vP+1+2*j}, 0xffff0000, v{vP+20+j}')
        for j in range(4):
            a(f'v_pk_mul_f32 {vr(vP+8+2*j,2)}, {vr(vP+8+2*j,2)}, {vr(vP+2*j,2)}')
        for j in range(0, 8, 2):
            round_bf16_pair(a, vP + 8 + j, vP + 9 + j, vP + 8 + j, vP + 9 + j, vP + 16)
        a(f'v_add_f32 v{vP+14}, v{vP+14}, v{vP+15}')
        a(f'v_add_f32 v{vP+8}, v{vP+8}, v{vP+9}')
        a(f'v_add_f32 v{vP+10}, v{vP+10}, v{vP+11}')
        a(f'v_add_f32 v{vP+12}, v{vP+12}, v{vP+13}')
        a(f'v_add_f32 v{vP+8}, v{vP+8}, v{vP+10}')
        a(f'v_add_f32 v{vP+12}, v{vP+12}, v{vP+14}')
        a(f'v_add_f32 v{vP+8}, v{vP+8}, v{vP+12}')
        g = vP + 8
        for sh in (1, 2, 4, 8):
            a('s_nop 1')
            a(f'v_add_f32_dpp v{g}, v{g}, v{g} row_shr:{sh} row_mask:0xf bank_mask:0xf bound_ctrl:0')
        a('s_nop 1')
        a(f'v_readlane_b32 s{sMt}, v{g}, 15')
        a(f'v_readlane_b32 s{sMt+1}, v{g}, 31')
        a(f'v_readlane_b32 s{sMt+2}, v{g}, 47')
        a(f'v_readlane_b32 s{sMt+3}, v{g}, 63')
        a('s_nop 1')
        a(f'v_mov_b32 v{g}, s{sMt}')
        a(f'v_add_f32 v{g}, s{sMt+1}, v{g}')
        a(f'v_mov_b32 v{g+1}, s{sMt+2}')
        a(f'v_add_f32 v{g+1}, s{sMt+3}, v{g+1}')
        a(f'v_add_f32 v{g}, v{g}, v{g+1}')
        a(f'v_cvt_pk_bf16_f32 v{g}, v{g}, v{g}')
        a(f'v_lshlrev_b32 v{g}, 16, v{g}')
        a(f'v_mul_f32 v{g}, {hex(f32bits(-LOG2E))}, v{g}')
        a(f'v_exp_f32 v{g}, v{g}')
        a('s_nop 0')
        a(f'v_add_f32 v{g}, 1.0, v{g}')
        a(f'v_rcp_f32 v{g}, v{g}')
        a('s_nop 0')
        a(f'v_cvt_pk_bf16_f32 v{g}, v{g}, v{g}')
        a(f'v_lshlrev_b32 v{g}, 16, v{g}')
        a('s_mov_b64 exec, 1')
        a(f'buffer_store_dword v{g}, v{vGo}, s[{SGATE}:{SGATE+3}], 0 offen')
        a('s_mov_b64 exec, -1')
        a('s_nop 4')

    waits = [6, 6, 6 + NPL, NPL + 6, 6, 0]

    def endstamp():
        if not STAMP: return
        a('s_waitcnt vmcnt(0)')
        stamp(a, 11)
        a('s_waitcnt lgkmcnt(0)')
        a('s_mov_b32 s75, s100')
        a('s_memrealtime s[100:101]')
        a('s_waitcnt lgkmcnt(0)')
        a('s_sub_u32 s74, s100, s75')
        a('s_add_u32 s100, s74, s76')
        stamp_flush(a, 13, sWS, sW, 2, SWR, extra=75)

    def mainloop(swapped):
        def rdA(step, h, mts=range(4)):
            slot = step % 3
            for mt in mts:
                if slot < 2:
                    a(f'ds_read_b128 {vr(AF[h]+mt*4,4)}, v{vAr+h} offset:{slot*32768 + mt*2048}')
                else:
                    a(f'ds_read_b128 {vr(AF[h]+mt*4,4)}, v{vAr+2+h} offset:{mt*2048}')
        def rdB(step, h, nts):
            slot = step % 3
            for nt in nts:
                half, t = nt >> 1, nt & 1
                for u in range(2):
                    a(f'ds_read_b64_tr_b16 {vr(BF[h]+nt*4+u*2,2)}, v{vBr+t} offset:{slot*16384 + half*8192 + h*4096 + u*512}')
        def mf(h, nt, mt):
            acc = vr(ACC + nt * 16 + mt * 4, 4)
            A_, B_ = vr(AF[h] + mt * 4, 4), vr(BF[h] + nt * 4, 4)
            if swapped:
                a(f'v_mfma_f32_16x16x32_bf16 {acc}, {B_}, {A_}, {acc}')
            else:
                a(f'v_mfma_f32_16x16x32_bf16 {acc}, {A_}, {B_}, {acc}')
        stamp(a, 1)
        a(f's_waitcnt vmcnt(6)')
        a('s_barrier')
        stamp(a, 2)
        issue_stage(2)
        rdA(0, 0); rdB(0, 0, range(4))
        for step in range(7):
            rdA(step, 1)
            a('s_waitcnt lgkmcnt(4)')
            for nt in range(4):
                rdB(step, 1, [nt])
                for mt in range(4):
                    mf(0, nt, mt)
            if step < 6:
                a(f's_waitcnt vmcnt({waits[step]}) lgkmcnt(0)')
                a('s_barrier')
                if not STAMP2: stamp(a, 3 + step)
                pieces = stage_pieces(step + 3) if step + 3 <= 6 else []
                if pieces:
                    pieces.pop(0)()
                if step in (4, 5):
                    lbl = f'K1_PREP_SKIP_{step}_{int(swapped)}'
                    a(f's_cmp_{"ge" if step == 4 else "lt"}_u32 s{sW}, 4')
                    a(f's_cbranch_scc1 {lbl}')
                    prep_compute()
                    a.label(lbl)
                cnt = 0
                for nt in range(4):
                    rdA(step + 1, 0, [nt])
                    rdB(step + 1, 0, [nt])
                    for mt in range(4):
                        mf(1, nt, mt)
                        cnt += 1
                        if pieces and cnt in (1, 4, 6, 9, 11, 14):
                            pieces.pop(0)()
                assert not pieces
                if step == 1:
                    prep_loads()
            else:
                a('s_waitcnt lgkmcnt(0)')
                for nt in range(4):
                    for mt in range(4):
                        mf(1, nt, mt)
        a('s_nop 7')
        a('s_nop 7')
        stamp(a, 10)

    a(f's_cmp_eq_u32 s{sIsD}, 1')
    a('s_cbranch_scc1 K1_DFT')
    mainloop(True)
    vO = vT
    a(f'v_and_b32 v{t1}, 15, v{vL}')
    a(f's_lshl_b32 s{sTmp}, s{sRB}, 8')
    a(f's_lshr_b32 s{sTmp2}, s{sW}, 1')
    a(f's_lshl_b32 s{sTmp2}, s{sTmp2}, 6')
    a(f's_add_u32 s{sTmp}, s{sTmp}, s{sTmp2}')
    a(f'v_add_u32 v{t1}, s{sTmp}, v{t1}')
    a(f'v_mul_u32_u24 v{t1}, 3584, v{t1}')
    a(f'v_bfe_u32 v{t2}, v{vL}, 4, 1')
    a(f'v_lshl_add_u32 v{t1}, v{t2}, 5, v{t1}')
    a(f'v_bfe_u32 v{t2}, v{vL}, 5, 1')
    a(f'v_lshl_add_u32 v{t1}, v{t2}, 4, v{t1}')
    a(f's_lshl_b32 s{sTmp}, s{sCB}, 7')
    a(f's_and_b32 s{sTmp2}, s{sW}, 1')
    a(f's_lshl_b32 s{sTmp2}, s{sTmp2}, 6')
    a(f's_add_u32 s{sTmp}, s{sTmp}, s{sTmp2}')
    a(f'v_add_u32 v{vO}, s{sTmp}, v{t1}')
    for mt in range(4):
        a(f's_mov_b32 s{sMt+mt}, {mt*16*3584}')
    a(f's_mov_b32 s{sC}, {hex(f32bits(GC1))}')
    a(f's_mov_b32 s{sC+1}, {hex(f32bits(GC1))}')
    vC0 = vT + 3
    assert vC0 % 2 == 0
    a(f'v_mov_b32 v{vC0}, {hex(f32bits(GC0))}')
    a(f'v_mov_b32 v{vC0+1}, {hex(f32bits(GC0))}')
    for mt in range(4):
        P = 128 + mt * 4
        for t in range(2):
            G_ = ACC + t * 16 + mt * 4
            U_ = ACC + (2 + t) * 16 + mt * 4
            T = 144 + (t * 16)
            for p in range(2):
                round_bf16_pair(a, G_ + 2 * p, G_ + 2 * p + 1, G_ + 2 * p, G_ + 2 * p + 1, T + 8 + p)
                round_bf16_pair(a, U_ + 2 * p, U_ + 2 * p + 1, U_ + 2 * p, U_ + 2 * p + 1, T + 10 + p)
            for p in range(2):
                a(f'v_pk_mul_f32 {vr(T+2*p,2)}, {vr(G_+2*p,2)}, {vr(G_+2*p,2)}')
            for p in range(2):
                a(f'v_pk_fma_f32 {vr(T+2*p,2)}, {vr(T+2*p,2)}, s[{sC}:{sC+1}], {vr(vC0,2)}')
            for p in range(2):
                a(f'v_pk_mul_f32 {vr(T+2*p,2)}, {vr(T+2*p,2)}, {vr(G_+2*p,2)}')
            for r in range(4):
                a(f'v_exp_f32 v{T+r}, v{T+r}')
            for p in range(2):
                a(f'v_pk_add_f32 {vr(T+2*p,2)}, {vr(T+2*p,2)}, 1.0 op_sel_hi:[1,0]')
            for r in range(4):
                a(f'v_rcp_f32 v{T+r}, v{T+r}')
            for p in range(2):
                a(f'v_pk_mul_f32 {vr(T+2*p,2)}, {vr(T+2*p,2)}, {vr(G_+2*p,2)}')
            for p in range(2):
                round_bf16_pair(a, T + 4 + 2 * p, T + 5 + 2 * p, T + 2 * p, T + 2 * p + 1, T + 8 + p)
            for p in range(2):
                a(f'v_pk_mul_f32 {vr(T+4+2*p,2)}, {vr(T+4+2*p,2)}, {vr(U_+2*p,2)}')
            for p in range(2):
                a(f'v_cvt_pk_bf16_f32 v{P+2*t+p}, v{T+4+2*p}, v{T+5+2*p}')
        a('s_nop 1')
        a(f'v_permlane16_swap_b32 v{P}, v{P+2}')
        a(f'v_permlane16_swap_b32 v{P+1}, v{P+3}')
        a('s_nop 1')
        a(f'buffer_store_dwordx4 {vr(P,4)}, v{vO}, s[{SO}:{SO+3}], s{sMt+mt} offen')
    endstamp()
    a('s_endpgm')
    a.label('K1_DFT')
    mainloop(False)
    a(f'v_and_b32 v{t1}, 15, v{vL}')
    a(f's_lshl_b32 s{sTmp}, s{sCB}, 7')
    a(f's_and_b32 s{sTmp2}, s{sW}, 1')
    a(f's_lshl_b32 s{sTmp2}, s{sTmp2}, 5')
    a(f's_add_u32 s{sTmp}, s{sTmp}, s{sTmp2}')
    a(f'v_add_u32 v{t1}, s{sTmp}, v{t1}')
    a(f'v_lshlrev_b32 v{t1}, 13, v{t1}')
    a(f'v_lshrrev_b32 v{t2}, 4, v{vL}')
    a(f'v_lshl_add_u32 v{t1}, v{t2}, 4, v{t1}')
    a(f's_lshl_b32 s{sTmp}, s{sRB}, 10')
    a(f's_lshr_b32 s{sTmp2}, s{sW}, 1')
    a(f's_lshl_b32 s{sTmp2}, s{sTmp2}, 8')
    a(f's_add_u32 s{sTmp}, s{sTmp}, s{sTmp2}')
    a(f'v_add_u32 v{vT}, s{sTmp}, v{t1}')
    for nt in range(4):
        coff = ((nt >> 1) * 64 + (nt & 1) * 16) * 8192
        a(f's_mov_b32 s{sMt+nt}, {coff}')
    for nt in range(4):
        for mt in range(4):
            a(f'buffer_store_dwordx4 {vr(ACC+nt*16+mt*4,4)}, v{vT}, s[{SO}:{SO+3}], s{sMt+nt} offen offset:{mt*64}')
    endstamp()
    a.label('K1_END')
    a('s_endpgm')
    kernel_desc(a, name, 192)

def gen_tables(a):
    a.raw('.altmacro')
    for i in range(448):
        c = math.cos(2 * math.pi * i / 448); s = math.sin(2 * math.pi * i / 448)
        if i % 112 == 0:
            c = [1.0, 0.0, -1.0, 0.0][i // 112]; s = [0.0, 1.0, 0.0, -1.0][i // 112]
        sc = 1.0 / (448 * 2048)
        a.raw(f'.set CF_{i}, {bf16bits(c)}')
        a.raw(f'.set SF_{i}, {bf16bits(-s)}')
        a.raw(f'.set CG1_{i}, {bf16bits(c*sc)}')
        a.raw(f'.set CG2_{i}, {bf16bits(2*c*sc)}')
        a.raw(f'.set SG_{i}, {bf16bits(-2*s*sc)}')
    for n in ('CF', 'SF', 'CG1', 'CG2', 'SG'):
        a.raw(f'.macro em{n} idx')
        a.raw(f'  .short {n}_\\idx')
        a.raw('.endm')
    a.raw('.section .rodata,"a"')
    a.raw('.p2align 8')
    a.raw('.type tblF,@object')
    a.label('tblF')
    a.raw('''.set td, 0
.rept 448
  .set tc, 0
  .rept 225
    emCF %((td*tc)%448)
    .set tc, tc+1
  .endr
  .set tc, 1
  .rept 223
    emSF %((td*tc)%448)
    .set tc, tc+1
  .endr
  .fill 64, 2, 0
  .set td, td+1
.endr''')
    a.raw('.p2align 8')
    a.raw('.type tblG,@object')
    a.label('tblG')
    a.raw('''.set td, 0
.rept 448
  emCG1 0
.endr
.set tc, 1
.rept 223
  .set td, 0
  .rept 448
    emCG2 %((td*tc)%448)
    .set td, td+1
  .endr
  .set tc, tc+1
.endr
.set td, 0
.rept 448
  emCG1 %((td*224)%448)
  .set td, td+1
.endr
.set tc, 1
.rept 223
  .set td, 0
  .rept 448
    emSG %((td*tc)%448)
    .set td, td+1
  .endr
  .set tc, tc+1
.endr''')

HEADER = open('cdna_kernels/' + NAME + '.s.ref').read().split('; Override launch')[0]

def main(out):
    a = Asm()
    a.raw(HEADER.rstrip('\n'))
    launches = [('k1_kernel', (256, 1, 1), (512, 1, 1), 147456)]
    for k, g, b, l in launches:
        a.raw(f'; @launch kernel={k} grid=({g[0]},{g[1]},{g[2]}) block=({b[0]},{b[1]},{b[2]}) lds={l}')
    a.raw('.amdgcn_target "amdgcn-amd-amdhsa--gfx950"')
    gen_k1(a)
    gen_tables(a)
    open(out, 'w').write('\n'.join(a.L) + '\n')

if __name__ == '__main__':
    if len(sys.argv) > 2 and sys.argv[2].startswith('stamp'): STAMP = True
    if len(sys.argv) > 2 and sys.argv[2] == 'stamp2': STAMP2 = True
    main(sys.argv[1] if len(sys.argv) > 1 else 'k.s')
```

```python
import sys
from gen import *
def gen_bw(a, name, mode, iters, nwaves, depth, nwg, flags):
    kernel_header(a, name)
    a('s_load_dwordx2 s[4:5], s[0:1], 80')
    a('v_lshrrev_b32 v1, 6, v0')
    a('s_nop 0')
    a('v_readfirstlane_b32 s20, v1')
    a('v_and_b32 v2, 63, v0')
    a('v_lshlrev_b32 v3, 4, v2')
    per_wg = iters * nwaves * depth * 1024
    a(f's_mul_i32 s22, s20, {depth*1024}')
    a(f's_mul_i32 s23, s2, {per_wg}')
    a('s_add_u32 s22, s22, s23')
    a('v_add_u32 v3, s22, v3')
    a('s_waitcnt lgkmcnt(0)')
    srd(a, 8, 4, 5, 250 << 20)
    a(f's_mul_i32 s24, s20, {depth*1024}')
    a('s_mov_b32 s25, 0')
    a('s_mov_b32 s26, 0')
    step = nwaves * depth * 1024
    a.label(name + '_L')
    for d in range(depth):
        a(f's_add_u32 s27, s25, {d*1024}')
        if mode == 'dma':
            a(f's_add_u32 m0, s24, {d*1024}')
            a('s_nop 0')
            a(f'buffer_load_dwordx4 v3, s[8:11], s27 offen {flags} lds')
        else:
            a(f'buffer_load_dwordx4 {vr(8+4*d,4)}, v3, s[8:11], s27 offen {flags}')
        a(f's_waitcnt vmcnt({depth-1})')
    a(f's_add_u32 s25, s25, {step}')
    a('s_add_u32 s26, s26, 1')
    a(f's_cmp_lt_u32 s26, {iters}')
    a(f's_cbranch_scc1 {name}_L')
    a('s_waitcnt vmcnt(0)')
    a('s_endpgm')
    kernel_desc(a, name, 160)

a = Asm()
a.raw(HEADER.rstrip('\n'))
cfgs = []
i = 0
for nwg in (32, 256):
  for mode, flags in (('dma', ''), ('vgpr', ''), ('dma', 'nt'), ('dma', 'sc1')):
    for nw, depth in ((8, 1), (8, 2), (8, 4), (8, 8), (8, 16)):
        iters = 768 // (nw * depth)
        cfgs.append((f'bw{i}_kernel', mode, iters, nw, depth, nwg, flags)); i += 1
for c in cfgs:
    a.raw(f'; @launch kernel={c[0]} grid=({c[5]},1,1) block=({c[3]*64},1,1) lds={c[3]*c[4]*1024 if c[1]=="dma" else 0}')
a.raw('.amdgcn_target "amdgcn-amd-amdhsa--gfx950"')
for c in cfgs:
    gen_bw(a, *c)
open('bw2.s', 'w').write('\n'.join(a.L) + '\n')
import json; json.dump(cfgs, open('bw2.json', 'w'))
```

```python
import math, struct, sys
import numpy as np

NAME = 'gated_mix__spectral_gfnet__glu_gated_geglu__prompt'
S, D, F = 2048, 448, 1792
WS_H    = 0x0000000
WS_X1T  = 0x0800000
WS_WT   = 0x0C00000
WS_GATE = 0x0E00000
WS_Y1T  = 0x0F00000
WS_B    = 0x1100000

def f32bits(x):
    return struct.unpack('<I', struct.pack('<f', x))[0]

def bf16bits(x):
    u = f32bits(np.float32(x))
    r = (u + 0x7FFF + ((u >> 16) & 1)) >> 16
    return r & 0xFFFF

class Asm:
    def __init__(self):
        self.L = []
    def __call__(self, s):
        import re
        m = re.search(r'offset:(\d+)', s)
        if m:
            lim = 4095 if s.startswith('buffer_') else 65535
            assert int(m.group(1)) <= lim, s
        self.L.append('  ' + s)
    def label(self, s):
        self.L.append(s + ':')
    def raw(self, s):
        self.L.append(s)
    def c(self, s):
        self.L.append('  ; ' + s)

def vr(b, n=1):
    return f'v{b}' if n == 1 else f'v[{b}:{b+n-1}]'
def sr(b, n=1):
    return f's{b}' if n == 1 else f's[{b}:{b+n-1}]'

def srd(a, d, lo, hi, nbytes):
    a(f's_mov_b32 s{d}, s{lo}')
    a(f's_and_b32 s{d+1}, s{hi}, 0xffff')
    a(f's_mov_b32 s{d+2}, {nbytes}')
    a(f's_mov_b32 s{d+3}, 0x00020000')

def srd_off(a, d, lo, hi, off, nbytes):
    a(f's_add_u32 s{d}, s{lo}, {off}')
    a(f's_addc_u32 s{d+1}, s{hi}, 0')
    a(f's_and_b32 s{d+1}, s{d+1}, 0xffff')
    a(f's_mov_b32 s{d+2}, {nbytes}')
    a(f's_mov_b32 s{d+3}, 0x00020000')

def kernel_header(a, name):
    a.raw('.text')
    a.raw(f'.globl {name}')
    a.raw('.p2align 8')
    a.raw(f'.type {name},@function')
    a.label(name)

def kernel_desc(a, name, vgpr, sgpr=102):
    acc = (vgpr + 3) // 4 * 4
    a.raw('.section .rodata,"a"')
    a.raw('.p2align 6')
    a.raw(f'.amdhsa_kernel {name}')
    a.raw(f'  .amdhsa_next_free_vgpr {vgpr}')
    a.raw(f'  .amdhsa_next_free_sgpr {sgpr}')
    a.raw(f'  .amdhsa_accum_offset {acc}')
    a.raw('  .amdhsa_group_segment_fixed_size 0')
    a.raw('  .amdhsa_kernarg_size 88')
    a.raw('  .amdhsa_user_sgpr_count 2')
    a.raw('  .amdhsa_user_sgpr_kernarg_segment_ptr 1')
    a.raw('  .amdhsa_system_sgpr_workgroup_id_x 1')
    a.raw('  .amdhsa_float_denorm_mode_32 3')
    a.raw('.end_amdhsa_kernel')

STAMP = False
STAMP2 = False
import os
EXP = os.environ.get('EXP', '')
def stamp(a, idx):
    if STAMP:
        a(f's_memtime s[{76+2*idx}:{77+2*idx}]')
def stamp_flush(a, n, sWSlo, sW, scr_v, srd_s, extra=None, region=0x2000000):
    if not STAMP: return
    a('s_waitcnt lgkmcnt(0)')
    srd_off(a, srd_s, sWSlo, sWSlo+1, region, 0x100000)
    a(f's_lshl_b32 s74, s2, 3')
    a(f's_add_u32 s74, s74, s{sW}')
    a(f's_lshl_b32 s74, s74, 6')
    a(f'v_mov_b32 v{scr_v}, s74')
    a('s_mov_b64 exec, 1')
    for i in range(n):
        a(f'v_mov_b32 v{scr_v+1}, s{76+2*i}')
        a(f'buffer_store_dword v{scr_v+1}, v{scr_v}, s[{srd_s}:{srd_s+3}], 0 offen offset:{4*i}')
        a('s_nop 1')
    if extra is not None:
        a(f'v_mov_b32 v{scr_v+1}, s{extra}')
        a(f'buffer_store_dword v{scr_v+1}, v{scr_v}, s[{srd_s}:{srd_s+3}], 0 offen offset:60')
    a('s_mov_b64 exec, -1')
def stamp_begin(a):
    if STAMP:
        stamp(a, 0)
        a('s_memrealtime s[100:101]')
def stamp_end(a, sWS, sW, scr_v, srd_s, region):
    if not STAMP: return
    a('s_waitcnt vmcnt(0)')
    stamp(a, 11)
    a('s_waitcnt lgkmcnt(0)')
    a('s_mov_b32 s75, s100')
    a('s_memrealtime s[100:101]')
    a('s_waitcnt lgkmcnt(0)')
    a('s_sub_u32 s74, s100, s75')
    a('s_add_u32 s100, s74, s76')
    stamp_flush(a, 13, sWS, sW, scr_v, srd_s, extra=75, region=region)
LOG2E = 1.4426950408889634
GC0 = -2.0 * LOG2E * math.sqrt(2.0 / math.pi)
GC1 = GC0 * 0.044715

def round_bf16_pair(a, d0, d1, s0, s1, tmp):
    a(f'v_cvt_pk_bf16_f32 v{tmp}, v{s0}, v{s1}')
    a(f'v_lshlrev_b32 v{d0}, 16, v{tmp}')
    a(f'v_and_b32 v{d1}, 0xffff0000, v{tmp}')

def gen_k1(a):
    name = 'k1_kernel'
    kernel_header(a, name)
    sX, sWg, sWu, sWr, sWi, sGW, sWS = 4, 6, 8, 10, 12, 14, 16
    SA, SBG, SBU, SO = 20, 24, 28, 32
    SWR, SWI, SWT, SGWs, SGATE = 36, 40, 44, 48, 52
    sCB, sRB, sW, sStride, sKB, sTmp, sTmp2, sIsD = 56, 57, 58, 59, 60, 61, 62, 63
    sM0A, sM0B = 64, 65
    sOffA, sOffB = 66, 67
    sMt = 68
    sC = 98
    a('s_cmp_ge_u32 s2, 256')
    a('s_cbranch_scc1 K1_END')
    stamp(a, 0)
    if STAMP: a('s_memrealtime s[100:101]')
    a('s_load_dwordx2 s[4:5], s[0:1], 0')
    a('s_load_dwordx2 s[6:7], s[0:1], 32')
    a('s_load_dwordx2 s[8:9], s[0:1], 40')
    a('s_load_dwordx2 s[10:11], s[0:1], 8')
    a('s_load_dwordx2 s[12:13], s[0:1], 16')
    a('s_load_dwordx2 s[14:15], s[0:1], 56')
    a('s_load_dwordx2 s[16:17], s[0:1], 80')
    a('s_load_dwordx2 s[72:73], s[0:1], 48')
    a('v_lshrrev_b32 v1, 6, v0')
    a('s_nop 0')
    a(f'v_readfirstlane_b32 s{sW}, v1')
    sG, sJ = 74, 75
    a(f's_and_b32 s{sRB}, s2, 1')
    a(f's_lshl_b32 s{sRB}, s{sRB}, 2')
    a(f's_lshr_b32 s{sJ}, s2, 3')
    a(f's_and_b32 s{sTmp}, s{sJ}, 3')
    a(f's_add_u32 s{sRB}, s{sRB}, s{sTmp}')
    a(f's_bfe_u32 s{sG}, s2, 0x20001')
    a(f's_lshr_b32 s{sTmp2}, s2, 5')
    a(f's_getpc_b64 s[18:19]')
    a(f's_add_u32 s18, s18, tblF@rel32@lo+4')
    a(f's_addc_u32 s19, s19, tblF@rel32@hi+12')
    a('s_waitcnt lgkmcnt(0)')
    if STAMP2: stamp(a, 3)
    srd(a, SA, sX, sX + 1, S * D * 2)
    srd(a, SWR, sWr, sWr + 1, S * 225 * 2)
    srd(a, SWI, sWi, sWi + 1, S * 225 * 2)
    srd(a, SGWs, sGW, sGW + 1, D * 2)
    srd_off(a, SWT, sWS, sWS + 1, WS_WT, 225 * 8192)
    srd_off(a, SGATE, sWS, sWS + 1, WS_GATE, 2048 * 4)
    STC = 24
    a('s_getpc_b64 s[28:29]')
    a('s_add_u32 s28, s28, tblG@rel32@lo+4')
    a('s_addc_u32 s29, s29, tblG@rel32@hi+12')
    bufs = [(sX, S*D*2), (sWg, D*F*2), (sWu, D*F*2), (18, 448*1024), (72, F*D*2), (28, 448*896 + 2560), (sWr, S*225*2), (sWi, S*225*2)]
    a(f's_mov_b32 s{STC}, s{bufs[0][0]}')
    a(f's_mov_b32 s{STC+1}, s{bufs[0][0]+1}')
    a(f's_mov_b32 s{STC+2}, {bufs[0][1]}')
    a(f's_mov_b32 s{sOffA}, {(bufs[0][1] + 255)//256}')
    for i in range(1, 8):
        a(f's_cmp_eq_u32 s{sW}, {i}')
        a(f's_cselect_b32 s{STC}, s{bufs[i][0]}, s{STC}')
        a(f's_cselect_b32 s{STC+1}, s{bufs[i][0]+1}, s{STC+1}')
        a(f's_cselect_b32 s{STC+2}, {bufs[i][1]}, s{STC+2}')
        a(f's_cselect_b32 s{sOffA}, {(bufs[i][1] + 255)//256}, s{sOffA}')
    a(f's_and_b32 s{STC+1}, s{STC+1}, 0xffff')
    a(f's_mov_b32 s{STC+3}, 0x00020000')
    a(f'v_and_b32 v1, 63, v0')
    a(f'v_lshlrev_b32 v2, 7, v1')
    a(f'v_mov_b32 v3, 0x7f000000')
    a(f'v_cmp_gt_u32 vcc, s{sOffA}, v2')
    a(f's_mul_i32 s{sOffA}, s{sOffA}, s2')
    a(f's_and_b32 s{sOffA}, s{sOffA}, 0xfffffffc')
    a(f'v_cndmask_b32 v2, v3, v2, vcc')
    a(f'buffer_load_dword v31, v2, s[{STC}:{STC+3}], s{sOffA} offen')
    a(f's_cmp_ge_u32 s{sTmp2}, 7')
    a(f's_cselect_b32 s{sIsD}, 1, 0')
    a('s_cbranch_scc1 K1_SETUP_DFT')
    a(f's_mul_i32 s{sCB}, s{sG}, 7')
    a(f's_add_u32 s{sCB}, s{sCB}, s{sTmp2}')
    a(f's_lshl_b32 s{sTmp}, s{sCB}, 7')
    a(f's_add_u32 s{SBG}, s{sWg}, s{sTmp}')
    a(f's_addc_u32 s{SBG+1}, s{sWg+1}, 0')
    a(f's_and_b32 s{SBG+1}, s{SBG+1}, 0xffff')
    a(f's_sub_u32 s{SBG+2}, {D*F*2}, s{sTmp}')
    a(f's_mov_b32 s{SBG+3}, 0x00020000')
    a(f's_add_u32 s{SBU}, s{sWu}, s{sTmp}')
    a(f's_addc_u32 s{SBU+1}, s{sWu+1}, 0')
    a(f's_and_b32 s{SBU+1}, s{SBU+1}, 0xffff')
    a(f's_sub_u32 s{SBU+2}, {D*F*2}, s{sTmp}')
    a(f's_mov_b32 s{SBU+3}, 0x00020000')
    a(f's_mov_b32 s{sStride}, 3584')
    srd_off(a, SO, sWS, sWS + 1, WS_H, S * F * 2)
    a('s_branch K1_SETUP_DONE')
    a.label('K1_SETUP_DFT')
    a(f's_mov_b32 s{sCB}, s{sG}')
    a(f's_lshl_b32 s{sTmp}, s{sCB}, 8')
    a(f's_add_u32 s{SBG}, s18, s{sTmp}')
    a(f's_addc_u32 s{SBG+1}, s19, 0')
    a(f's_and_b32 s{SBG+1}, s{SBG+1}, 0xffff')
    a(f's_sub_u32 s{SBG+2}, {448*1024}, s{sTmp}')
    a(f's_mov_b32 s{SBG+3}, 0x00020000')
    a(f's_add_u32 s{sTmp}, s{sTmp}, 128')
    a(f's_add_u32 s{SBU}, s18, s{sTmp}')
    a(f's_addc_u32 s{SBU+1}, s19, 0')
    a(f's_and_b32 s{SBU+1}, s{SBU+1}, 0xffff')
    a(f's_sub_u32 s{SBU+2}, {448*1024}, s{sTmp}')
    a(f's_mov_b32 s{SBU+3}, 0x00020000')
    a(f's_mov_b32 s{sStride}, 1024')
    srd_off(a, SO, sWS, sWS + 1, WS_X1T, 448 * 8192)
    a.label('K1_SETUP_DONE')

    vL = 1
    vAd = 2
    vBd = 6
    vAr = 7
    vBr = 11
    vT = 13
    vP = 32
    ACC = 64
    AF = [128, 144]
    BF = [160, 176]
    t0, t1, t2 = vT, vT + 1, vT + 2
    a(f'v_and_b32 v{vL}, 63, v0')
    a(f'v_lshrrev_b32 v{t0}, 3, v{vL}')
    a(f's_lshl_b32 s{sTmp}, s{sRB}, 8')
    a(f's_lshl_b32 s{sTmp2}, s{sW}, 5')
    a(f's_add_u32 s{sTmp}, s{sTmp}, s{sTmp2}')
    a(f'v_add_u32 v{t0}, s{sTmp}, v{t0}')
    a(f'v_mul_u32_u24 v{t0}, 896, v{t0}')
    a(f'v_lshrrev_b32 v{t1}, 4, v{vL}')
    a(f'v_and_b32 v{t2}, 7, v{vL}')
    a(f'v_xor_b32 v{t2}, v{t2}, v{t1}')
    a(f'v_xor_b32 v{t1}, 4, v{t2}')
    for j in range(4):
        a(f'v_lshl_add_u32 v{vAd+j}, v{t1 if j & 1 else t2}, 4, v{t0}')
        if j:
            a(f'v_add_u32 v{vAd+j}, {j*8*896}, v{vAd+j}')
    a(f'v_lshrrev_b32 v{t0}, 3, v{vL}')
    a(f's_lshl_b32 s{sTmp}, s{sW}, 3')
    a(f'v_add_u32 v{t0}, s{sTmp}, v{t0}')
    a(f'v_mul_lo_u32 v{t0}, v{t0}, s{sStride}')
    a(f'v_bfe_u32 v{t1}, v{vL}, 4, 1')
    a(f's_and_b32 s{sTmp2}, s{sW}, 1')
    a(f's_lshl_b32 s{sTmp2}, s{sTmp2}, 1')
    a(f'v_or_b32 v{t1}, s{sTmp2}, v{t1}')
    a(f'v_bfe_u32 v{t2}, v{vL}, 1, 2')
    a(f'v_xor_b32 v{t2}, v{t2}, v{t1}')
    a(f'v_lshl_add_u32 v{t0}, v{t2}, 5, v{t0}')
    a(f'v_and_b32 v{t2}, 1, v{vL}')
    a(f'v_lshl_add_u32 v{vBd}, v{t2}, 4, v{t0}')
    a(f's_lshl_b32 s{sM0A}, s{sW}, 12')
    a(f's_lshl_b32 s{sM0B}, s{sW}, 10')
    a(f's_add_u32 s{sM0B}, s{sM0B}, 98304')

    def stage_pieces(step):
        slot = step % 3
        def setup():
            a(f's_mov_b32 s{sOffA}, {step*128}')
            a(f's_mul_i32 s{sOffB}, s{sStride}, {step*64}')
        def pa(j):
            def f():
                a(f's_add_u32 m0, s{sM0A}, {slot*32768 + j*1024}')
                a('s_nop 0')
                a(f'buffer_load_dwordx4 v{vAd+j}, s[{SA}:{SA+3}], s{sOffA} offen lds')
            return f
        def pb(half):
            def f():
                a(f's_add_u32 m0, s{sM0B}, {slot*16384 + half*8192}')
                a('s_nop 0')
                sb = SBU if half else SBG
                a(f'buffer_load_dwordx4 v{vBd}, s[{sb}:{sb+3}], s{sOffB} offen lds')
            return f
        return [setup] + [pa(j) for j in range(4)] + [pb(0), pb(1)]
    def issue_stage(step):
        for f in stage_pieces(step):
            f()

    if STAMP2: stamp(a, 4)
    for st in range(2):
        issue_stage(st)
        if STAMP2: stamp(a, 5+st)
    vWTo = vT + 6
    vGo = vT + 7
    vWTr = vT + 8
    vX = 192
    vGW = 196
    NPL = 2
    def prep_loads():
        a(f's_lshl_b32 s{sKB}, s2, 3')
        a(f's_add_u32 s{sKB}, s{sKB}, s{sW}')
        a(f's_mul_i32 s{sTmp2}, s{sKB}, 896')
        a(f'v_lshlrev_b32 v{t1}, 4, v{vL}')
        a(f'v_mov_b32 v{t2}, 0x7f000000')
        a(f'v_cmp_gt_u32 vcc, 56, v{vL}')
        a('s_nop 1')
        a(f'v_cndmask_b32 v{t2}, v{t2}, v{t1}, vcc')
        a(f'buffer_load_dwordx4 {vr(vX,4)}, v{t2}, s[{SA}:{SA+3}], s{sTmp2} offen')
        a(f'buffer_load_dwordx4 {vr(vGW,4)}, v{t1}, s[{SGWs}:{SGWs+3}], 0 offen')
        a(f's_lshl_b32 s{sTmp}, s{sKB}, 2')
        a(f'v_mov_b32 v{vGo}, s{sTmp}')
    WBASE = 147456
    def wt_dma():
        a(f's_lshr_b32 s{sTmp}, s2, 5')
        a(f's_bfe_u32 s{sTmp2}, s2, 0x30002')
        a(f's_lshl_b32 s{sTmp2}, s{sTmp2}, 3')
        a(f's_add_u32 s{sTmp}, s{sTmp}, s{sTmp2}')
        a(f's_and_b32 s{sTmp2}, s2, 3')
        a(f's_lshl_b32 s{sTmp2}, s{sTmp2}, 7')
        a(f's_add_u32 s{sTmp}, s{sTmp}, s{sTmp2}')
        a(f's_bfe_u32 s{sTmp2}, s{sW}, 0x10001')
        a(f's_lshl_b32 s{sTmp2}, s{sTmp2}, 6')
        a(f's_add_u32 s{sTmp}, s{sTmp}, s{sTmp2}')
        a(f's_and_b32 s{sTmp2}, s{sW}, 1')
        a(f's_lshl_b32 s{sTmp2}, s{sTmp2}, 10')
        a(f's_add_u32 s{sTmp}, s{sTmp}, s{sTmp2}')
        a(f's_mul_i32 s{sTmp}, s{sTmp}, 450')
        a(f's_and_b32 s{sTmp}, s{sTmp}, 0xfffffffc')
        a(f'v_lshrrev_b32 v{t1}, 5, v{vL}')
        a(f'v_mul_u32_u24 v{t1}, {512*450}, v{t1}')
        a(f'v_and_b32 v{t2}, 31, v{vL}')
        a(f'v_lshl_add_u32 v{t1}, v{t2}, 4, v{t1}')
        a(f's_lshl_b32 s{sTmp2}, s{sW}, 10')
        a(f's_add_u32 m0, s{sTmp2}, {WBASE}')
        a(f's_cmp_ge_u32 s{sW}, 4')
        a('s_cbranch_scc1 K1_WT_IM')
        a(f'buffer_load_dwordx4 v{t1}, s[{SWR}:{SWR+3}], s{sTmp} offen lds')
        a('s_branch K1_WT_DONE')
        a.label('K1_WT_IM')
        a(f'buffer_load_dwordx4 v{t1}, s[{SWI}:{SWI+3}], s{sTmp} offen lds')
        a.label('K1_WT_DONE')
        a(f's_bfe_u32 s{sTmp}, s2, 0x10005')
        a(f's_lshl_b32 s{sTmp}, s{sTmp}, 1')
        a(f's_add_u32 s{sTmp}, s{sTmp}, {WBASE}')
        a(f'v_and_b32 v{t1}, 255, v0')
        a(f'v_lshl_add_u32 v{vWTr}, v{t1}, 1, s{sTmp}')
        a(f's_mul_i32 s{sTmp}, s2, 7200')
        a(f'v_lshlrev_b32 v{vWTo}, 5, v0')
        a(f'v_add_u32 v{vWTo}, s{sTmp}, v{vWTo}')
        a(f'v_mov_b32 v{t1}, 0x7f000000')
        a(f'v_cmp_gt_u32 vcc, 225, v0')
        a('s_nop 1')
        a(f'v_cndmask_b32 v{vWTo}, v{t1}, v{vWTo}, vcc')
    def wt_store(tag):
        for sl in range(8):
            a(f'ds_read_u16 v{vP+sl}, v{vWTr} offset:{sl*512}')
            a(f'ds_read_u16 v{vP+8+sl}, v{vWTr} offset:{4096 + sl*512}')
        a('s_waitcnt lgkmcnt(0)')
        for sl in range(8):
            a(f'v_lshl_or_b32 v{vP+sl}, v{vP+8+sl}, 16, v{vP+sl}')
        a(f'buffer_store_dwordx4 {vr(vP,4)}, v{vWTo}, s[{SWT}:{SWT+3}], 0 offen')
        a(f'buffer_store_dwordx4 {vr(vP+4,4)}, v{vWTo}, s[{SWT}:{SWT+3}], 0 offen offset:16')
    wt_dma()
    prep_loads()
    if STAMP2: stamp(a, 8)
    a(f'v_and_b32 v{t0}, 15, v{vL}')
    a(f's_lshr_b32 s{sTmp}, s{sW}, 1')
    a(f's_lshl_b32 s{sTmp}, s{sTmp}, 6')
    a(f'v_add_u32 v{t1}, s{sTmp}, v{t0}')
    a(f'v_lshlrev_b32 v{t1}, 7, v{t1}')
    a(f'v_lshrrev_b32 v{t0}, 1, v{t0}')
    a(f'v_lshrrev_b32 v{t2}, 4, v{vL}')
    a(f'v_xor_b32 v{t0}, v{t0}, v{t2}')
    a(f'v_lshl_add_u32 v{vAr}, v{t0}, 4, v{t1}')
    a(f'v_xor_b32 v{vAr+1}, 64, v{vAr}')
    a(f'v_add_u32 v{vAr+2}, 0x10000, v{vAr}')
    a(f'v_add_u32 v{vAr+3}, 0x10000, v{vAr+1}')
    a(f'v_bfe_u32 v{t0}, v{vL}, 2, 2')
    a(f'v_lshl_add_u32 v{t1}, v{t2}, 3, v{t0}')
    a(f'v_lshlrev_b32 v{t1}, 7, v{t1}')
    a(f'v_add_u32 v{t1}, 98304, v{t1}')
    a(f'v_and_b32 v{vT+5}, 3, v{vL}')
    a(f'v_lshl_add_u32 v{t1}, v{vT+5}, 3, v{t1}')
    a(f'v_lshrrev_b32 v{t0}, 1, v{t0}')
    a(f'v_and_b32 v{t2}, 1, v{t2}')
    a(f'v_lshl_or_b32 v{t0}, v{t2}, 1, v{t0}')
    a(f's_and_b32 s{sTmp}, s{sW}, 1')
    a(f's_lshl_b32 s{sTmp}, s{sTmp}, 1')
    a(f'v_xor_b32 v{t0}, s{sTmp}, v{t0}')
    a(f'v_lshl_add_u32 v{vBr}, v{t0}, 5, v{t1}')
    a(f'v_xor_b32 v{vBr+1}, 32, v{vBr}')
    for i in range(64):
        a(f'v_mov_b32 v{ACC+i}, 0')

    def warm_touch():
        SPF = 36
        a(f'v_mov_b32 v{t1}, 0x7f000000')
        a(f's_cmp_eq_u32 s{sW}, 0')
        a(f's_cbranch_scc0 K1_WARM1_{warm_touch.n}')
        srd(a, SPF, 72, 73, F * D * 2)
        a(f's_mul_i32 s{sTmp}, s2, {49*128}')
        a(f'v_lshlrev_b32 v{t2}, 7, v{vL}')
        a(f'v_cmp_gt_u32 vcc, 49, v{vL}')
        a('s_nop 1')
        a(f'v_cndmask_b32 v{t2}, v{t1}, v{t2}, vcc')
        a(f'buffer_load_dword v{vT+9}, v{t2}, s[{SPF}:{SPF+3}], s{sTmp} offen')
        a(f's_branch K1_WARM_END_{warm_touch.n}')
        a.label(f'K1_WARM1_{warm_touch.n}')
        a(f's_getpc_b64 s[{SPF+4}:{SPF+5}]')
        a(f's_add_u32 s{SPF+4}, s{SPF+4}, tblG@rel32@lo+4')
        a(f's_addc_u32 s{SPF+5}, s{SPF+5}, tblG@rel32@hi+12')
        srd(a, SPF, SPF + 4, SPF + 5, 448 * 896 + 256 + 2560)
        a(f's_mul_i32 s{sTmp}, s2, {13*128}')
        a(f'v_lshlrev_b32 v{t2}, 7, v{vL}')
        a(f'v_cmp_gt_u32 vcc, 13, v{vL}')
        a(f's_cmp_eq_u32 s{sW}, 1')
        a(f's_cselect_b32 s{sTmp}, s{sTmp}, 0x7f000000')
        a(f'v_cndmask_b32 v{t2}, v{t1}, v{t2}, vcc')
        a(f'buffer_load_dword v{vT+9}, v{t2}, s[{SPF}:{SPF+3}], s{sTmp} offen')
        a.label(f'K1_WARM_END_{warm_touch.n}')
        warm_touch.n += 1
    warm_touch.n = 0
    def prep_compute():
        GWU, PR, TP = 200, 208, 216
        for j in range(4):
            a(f'v_lshlrev_b32 v{GWU+2*j}, 16, v{vGW+j}')
            a(f'v_and_b32 v{GWU+1+2*j}, 0xffff0000, v{vGW+j}')
            a(f'v_lshlrev_b32 v{PR+2*j}, 16, v{vX+j}')
            a(f'v_and_b32 v{PR+1+2*j}, 0xffff0000, v{vX+j}')
        for j in range(4):
            a(f'v_pk_mul_f32 {vr(PR+2*j,2)}, {vr(PR+2*j,2)}, {vr(GWU+2*j,2)}')
        for j in range(4):
            round_bf16_pair(a, PR + 2 * j, PR + 2 * j + 1, PR + 2 * j, PR + 2 * j + 1, TP + j)
        a(f'v_pk_add_f32 {vr(PR,2)}, {vr(PR,2)}, {vr(PR+2,2)}')
        a(f'v_pk_add_f32 {vr(PR+4,2)}, {vr(PR+4,2)}, {vr(PR+6,2)}')
        a(f'v_pk_add_f32 {vr(PR,2)}, {vr(PR,2)}, {vr(PR+4,2)}')
        g = PR
        a(f'v_add_f32 v{g}, v{PR}, v{PR+1}')
        for sh in (1, 2, 4, 8):
            a('s_nop 1')
            a(f'v_add_f32_dpp v{g}, v{g}, v{g} row_shr:{sh} row_mask:0xf bank_mask:0xf bound_ctrl:0')
        a('s_nop 1')
        a(f'v_add_f32_dpp v{g}, v{g}, v{g} row_bcast:15 row_mask:0xa bank_mask:0xf')
        a('s_nop 1')
        a(f'v_add_f32_dpp v{g}, v{g}, v{g} row_bcast:31 row_mask:0xc bank_mask:0xf')
        a(f'v_cvt_pk_bf16_f32 v{g}, v{g}, v{g}')
        a(f'v_lshlrev_b32 v{g}, 16, v{g}')
        a(f'v_mul_f32 v{g}, {hex(f32bits(-LOG2E))}, v{g}')
        a(f'v_exp_f32 v{g}, v{g}')
        a('s_nop 0')
        a(f'v_add_f32 v{g}, 1.0, v{g}')
        a(f'v_rcp_f32 v{g}, v{g}')
        a('s_nop 0')
        a(f'v_cvt_pk_bf16_f32 v{g}, v{g}, v{g}')
        a(f'v_lshlrev_b32 v{g}, 16, v{g}')
        a('s_mov_b32 exec_lo, 0')
        a('s_mov_b32 exec_hi, 0x80000000')
        a(f'buffer_store_dword v{g}, v{vGo}, s[{SGATE}:{SGATE+3}], 0 offen')
        a('s_mov_b64 exec, -1')
        a('s_nop 4')

    def waits(step, dft):
        return [9, 6, 6, 8, 6, 0][step]

    def endstamp():
        if not STAMP: return
        a('s_waitcnt vmcnt(0)')
        stamp(a, 11)
        a('s_waitcnt lgkmcnt(0)')
        a('s_mov_b32 s75, s100')
        a('s_memrealtime s[100:101]')
        a('s_waitcnt lgkmcnt(0)')
        a('s_sub_u32 s74, s100, s75')
        a('s_add_u32 s100, s74, s76')
        stamp_flush(a, 13, sWS, sW, 2, SWR, extra=75)

    def mainloop(swapped):
        def rdA(step, h, mts=range(4)):
            slot = step % 3
            for mt in mts:
                if slot < 2:
                    a(f'ds_read_b128 {vr(AF[h]+mt*4,4)}, v{vAr+h} offset:{slot*32768 + mt*2048}')
                else:
                    a(f'ds_read_b128 {vr(AF[h]+mt*4,4)}, v{vAr+2+h} offset:{mt*2048}')
        def rdB(step, h, nts):
            slot = step % 3
            for nt in nts:
                half, t = nt >> 1, nt & 1
                for u in range(2):
                    a(f'ds_read_b64_tr_b16 {vr(BF[h]+nt*4+u*2,2)}, v{vBr+t} offset:{slot*16384 + half*8192 + h*4096 + u*512}')
        def mf(h, nt, mt):
            acc = vr(ACC + nt * 16 + mt * 4, 4)
            A_, B_ = vr(AF[h] + mt * 4, 4), vr(BF[h] + nt * 4, 4)
            if swapped:
                a(f'v_mfma_f32_16x16x32_bf16 {acc}, {B_}, {A_}, {acc}')
            else:
                a(f'v_mfma_f32_16x16x32_bf16 {acc}, {A_}, {B_}, {acc}')
        stamp(a, 1)
        a(f's_waitcnt vmcnt(9)')
        a('s_barrier')
        stamp(a, 2)
        issue_stage(2)
        rdA(0, 0); rdB(0, 0, range(4))
        for step in range(7):
            rdA(step, 1)
            a('s_waitcnt lgkmcnt(4)')
            for nt in range(4):
                rdB(step, 1, [nt])
                for mt in range(4):
                    mf(0, nt, mt)
            if step < 6:
                a(f's_waitcnt vmcnt({waits(step, not swapped)}) lgkmcnt(0)')
                a('s_barrier')
                if not STAMP2: stamp(a, 3 + step)
                if step == 2:
                    wt_store(int(swapped))
                if step in (2, 3):
                    lbl = f'K1_GATE_SKIP_{step}_{int(swapped)}'
                    a(f's_cmp_{"ge" if step == 2 else "lt"}_u32 s{sW}, 4')
                    a(f's_cbranch_scc1 {lbl}')
                    prep_compute()
                    a.label(lbl)
                pieces = stage_pieces(step + 3) if step + 3 <= 6 else []
                if pieces:
                    pieces.pop(0)()
                cnt = 0
                for nt in range(4):
                    rdA(step + 1, 0, [nt])
                    rdB(step + 1, 0, [nt])
                    for mt in range(4):
                        mf(1, nt, mt)
                        cnt += 1
                        if pieces and cnt in (1, 4, 6, 9, 11, 14):
                            pieces.pop(0)()
                assert not pieces
            else:
                a('s_waitcnt lgkmcnt(0)')
                for nt in range(4):
                    for mt in range(4):
                        mf(1, nt, mt)
        a('s_nop 7')
        a('s_nop 7')
        stamp(a, 10)

    a(f's_cmp_eq_u32 s{sIsD}, 1')
    a('s_cbranch_scc1 K1_DFT')
    mainloop(True)
    vO = vT
    a(f'v_and_b32 v{t1}, 15, v{vL}')
    a(f's_lshl_b32 s{sTmp}, s{sRB}, 8')
    a(f's_lshr_b32 s{sTmp2}, s{sW}, 1')
    a(f's_lshl_b32 s{sTmp2}, s{sTmp2}, 6')
    a(f's_add_u32 s{sTmp}, s{sTmp}, s{sTmp2}')
    a(f'v_add_u32 v{t1}, s{sTmp}, v{t1}')
    a(f'v_mul_u32_u24 v{t1}, 3584, v{t1}')
    a(f'v_bfe_u32 v{t2}, v{vL}, 4, 1')
    a(f'v_lshl_add_u32 v{t1}, v{t2}, 5, v{t1}')
    a(f'v_bfe_u32 v{t2}, v{vL}, 5, 1')
    a(f'v_lshl_add_u32 v{t1}, v{t2}, 4, v{t1}')
    a(f's_lshl_b32 s{sTmp}, s{sCB}, 7')
    a(f's_and_b32 s{sTmp2}, s{sW}, 1')
    a(f's_lshl_b32 s{sTmp2}, s{sTmp2}, 6')
    a(f's_add_u32 s{sTmp}, s{sTmp}, s{sTmp2}')
    a(f'v_add_u32 v{vO}, s{sTmp}, v{t1}')
    for mt in range(4):
        a(f's_mov_b32 s{sMt+mt}, {mt*16*3584}')
    a(f's_mov_b32 s{sC}, {hex(f32bits(GC1))}')
    a(f's_mov_b32 s{sC+1}, {hex(f32bits(GC1))}')
    vC0 = vT + 3
    assert vC0 % 2 == 0
    a(f'v_mov_b32 v{vC0}, {hex(f32bits(GC0))}')
    a(f'v_mov_b32 v{vC0+1}, {hex(f32bits(GC0))}')
    for mt in range(4):
        P = 128 + mt * 4
        for t in range(2):
            G_ = ACC + t * 16 + mt * 4
            U_ = ACC + (2 + t) * 16 + mt * 4
            T = 144 + (t * 16)
            for p in range(2):
                round_bf16_pair(a, G_ + 2 * p, G_ + 2 * p + 1, G_ + 2 * p, G_ + 2 * p + 1, T + 8 + p)
                round_bf16_pair(a, U_ + 2 * p, U_ + 2 * p + 1, U_ + 2 * p, U_ + 2 * p + 1, T + 10 + p)
            for p in range(2):
                a(f'v_pk_mul_f32 {vr(T+2*p,2)}, {vr(G_+2*p,2)}, {vr(G_+2*p,2)}')
            for p in range(2):
                a(f'v_pk_fma_f32 {vr(T+2*p,2)}, {vr(T+2*p,2)}, s[{sC}:{sC+1}], {vr(vC0,2)}')
            for p in range(2):
                a(f'v_pk_mul_f32 {vr(T+2*p,2)}, {vr(T+2*p,2)}, {vr(G_+2*p,2)}')
            for r in range(4):
                a(f'v_exp_f32 v{T+r}, v{T+r}')
            for p in range(2):
                a(f'v_pk_add_f32 {vr(T+2*p,2)}, {vr(T+2*p,2)}, 1.0 op_sel_hi:[1,0]')
            for r in range(4):
                a(f'v_rcp_f32 v{T+r}, v{T+r}')
            for p in range(2):
                a(f'v_pk_mul_f32 {vr(T+2*p,2)}, {vr(T+2*p,2)}, {vr(G_+2*p,2)}')
            for p in range(2):
                round_bf16_pair(a, T + 4 + 2 * p, T + 5 + 2 * p, T + 2 * p, T + 2 * p + 1, T + 8 + p)
            for p in range(2):
                a(f'v_pk_mul_f32 {vr(T+4+2*p,2)}, {vr(T+4+2*p,2)}, {vr(U_+2*p,2)}')
            for p in range(2):
                a(f'v_cvt_pk_bf16_f32 v{P+2*t+p}, v{T+4+2*p}, v{T+5+2*p}')
        a('s_nop 1')
        a(f'v_permlane16_swap_b32 v{P}, v{P+2}')
        a(f'v_permlane16_swap_b32 v{P+1}, v{P+3}')
        a('s_nop 1')
        a(f'buffer_store_dwordx4 {vr(P,4)}, v{vO}, s[{SO}:{SO+3}], s{sMt+mt} offen')
    endstamp()
    a('s_endpgm')
    a.label('K1_DFT')
    mainloop(False)
    a(f'v_and_b32 v{t1}, 15, v{vL}')
    a(f's_lshl_b32 s{sTmp}, s{sCB}, 7')
    a(f's_and_b32 s{sTmp2}, s{sW}, 1')
    a(f's_lshl_b32 s{sTmp2}, s{sTmp2}, 5')
    a(f's_add_u32 s{sTmp}, s{sTmp}, s{sTmp2}')
    a(f'v_add_u32 v{t1}, s{sTmp}, v{t1}')
    a(f'v_lshlrev_b32 v{t1}, 13, v{t1}')
    a(f'v_lshrrev_b32 v{t2}, 4, v{vL}')
    a(f'v_lshl_add_u32 v{t1}, v{t2}, 4, v{t1}')
    a(f's_lshl_b32 s{sTmp}, s{sRB}, 10')
    a(f's_lshr_b32 s{sTmp2}, s{sW}, 1')
    a(f's_lshl_b32 s{sTmp2}, s{sTmp2}, 8')
    a(f's_add_u32 s{sTmp}, s{sTmp}, s{sTmp2}')
    a(f'v_add_u32 v{vT}, s{sTmp}, v{t1}')
    for nt in range(4):
        coff = ((nt >> 1) * 64 + (nt & 1) * 16) * 8192
        a(f's_mov_b32 s{sMt+nt}, {coff}')
    for nt in range(4):
        for mt in range(4):
            a(f'buffer_store_dwordx4 {vr(ACC+nt*16+mt*4,4)}, v{vT}, s[{SO}:{SO+3}], s{sMt+nt} offen offset:{mt*64}')
    endstamp()
    a.label('K1_END')
    a('s_endpgm')
    kernel_desc(a, name, 224)

def cp(r):
    return f'v[{r}:{r+1}]'
def PK_PLAIN(): return 'scalar_all' not in EXP
def PK_SWZ(): return False
def cadd(a, d, x, y):
    if PK_PLAIN():
        a(f'v_pk_add_f32 {cp(d)}, {cp(x)}, {cp(y)}')
    else:
        a(f'v_add_f32 v{d}, v{x}, v{y}'); a(f'v_add_f32 v{d+1}, v{x+1}, v{y+1}')
def csub(a, d, x, y):
    if PK_PLAIN():
        a(f'v_pk_add_f32 {cp(d)}, {cp(x)}, {cp(y)} neg_lo:[0,1] neg_hi:[0,1]')
    else:
        a(f'v_sub_f32 v{d}, v{x}, v{y}'); a(f'v_sub_f32 v{d+1}, v{x+1}, v{y+1}')
def caddrot(a, d, x, y, minus_i):
    if not PK_SWZ():
        if minus_i:
            a(f'v_add_f32 v{d}, v{x}, v{y+1}'); a(f'v_sub_f32 v{d+1}, v{x+1}, v{y}')
        else:
            a(f'v_sub_f32 v{d}, v{x}, v{y+1}'); a(f'v_add_f32 v{d+1}, v{x+1}, v{y}')
        return
    if minus_i:
        a(f'v_pk_add_f32 {cp(d)}, {cp(x)}, {cp(y)} op_sel:[0,1] op_sel_hi:[1,0] neg_hi:[0,1]')
    else:
        a(f'v_pk_add_f32 {cp(d)}, {cp(x)}, {cp(y)} op_sel:[0,1] op_sel_hi:[1,0] neg_lo:[0,1]')
def cfmas(a, d, x, y, sS, neg):
    if not PK_PLAIN():
        n = '-' if neg else ''
        a(f'v_fma_f32 v{d}, {n}v{y}, s{sS}, v{x}'); a(f'v_fma_f32 v{d+1}, {n}v{y+1}, s{sS}, v{x+1}')
        return
    n = ' neg_lo:[1,0,0] neg_hi:[1,0,0]' if neg else ''
    a(f'v_pk_fma_f32 {cp(d)}, {cp(y)}, s[{sS}:{sS+1}], {cp(x)}{n}')
def cfmasrot(a, d, x, y, sS, minus_i):
    if not PK_SWZ():
        if minus_i:
            a(f'v_fma_f32 v{d}, v{y+1}, s{sS}, v{x}'); a(f'v_fma_f32 v{d+1}, -v{y}, s{sS}, v{x+1}')
        else:
            a(f'v_fma_f32 v{d}, -v{y+1}, s{sS}, v{x}'); a(f'v_fma_f32 v{d+1}, v{y}, s{sS}, v{x+1}')
        return
    if minus_i:
        a(f'v_pk_fma_f32 {cp(d)}, {cp(y)}, s[{sS}:{sS+1}], {cp(x)} op_sel:[1,0,0] op_sel_hi:[0,1,1] neg_hi:[1,0,0]')
    else:
        a(f'v_pk_fma_f32 {cp(d)}, {cp(y)}, s[{sS}:{sS+1}], {cp(x)} op_sel:[1,0,0] op_sel_hi:[0,1,1] neg_lo:[1,0,0]')
def cmul1(a, t, z, w):
    if not PK_SWZ():
        a(f'v_mul_f32 v{t}, v{z}, v{w}'); a(f'v_mul_f32 v{t+1}, v{z+1}, v{w}')
        return
    a(f'v_pk_mul_f32 {cp(t)}, {cp(z)}, {cp(w)} op_sel:[0,0] op_sel_hi:[1,0]')
def cmul2(a, d, z, w, t, conj):
    if not PK_SWZ():
        if conj:
            a(f'v_fma_f32 v{d}, v{z+1}, v{w+1}, v{t}'); a(f'v_fma_f32 v{d+1}, -v{z}, v{w+1}, v{t+1}')
        else:
            a(f'v_fma_f32 v{d}, -v{z+1}, v{w+1}, v{t}'); a(f'v_fma_f32 v{d+1}, v{z}, v{w+1}, v{t+1}')
        return
    if conj:
        a(f'v_pk_fma_f32 {cp(d)}, {cp(z)}, {cp(w)}, {cp(t)} op_sel:[1,1,0] op_sel_hi:[0,1,1] neg_hi:[1,0,0]')
    else:
        a(f'v_pk_fma_f32 {cp(d)}, {cp(z)}, {cp(w)}, {cp(t)} op_sel:[1,1,0] op_sel_hi:[0,1,1] neg_lo:[1,0,0]')
def cmul(a, d, z, w, t, conj=False):
    cmul1(a, t, z, w); cmul2(a, d, z, w, t, conj)

def dft8(a, Z, Y, T, sS, fwd):
    z = lambda i: Z + 2 * i
    y = lambda i: Y + 2 * i
    mi = fwd
    for i in range(4):
        cadd(a, y(i), z(i), z(i + 4))
    for i in range(4):
        csub(a, y(i + 4), z(i), z(i + 4))
    cadd(a, z(0), y(0), y(2)); cadd(a, z(1), y(1), y(3))
    csub(a, z(2), y(0), y(2)); csub(a, z(3), y(1), y(3))
    caddrot(a, z(4), y(5), y(5), mi); caddrot(a, z(5), y(7), y(7), mi)
    caddrot(a, z(6), y(4), y(6), mi); caddrot(a, z(7), y(4), y(6), not mi)
    caddrot(a, T, z(4), z(5), mi); caddrot(a, T + 2, z(4), z(5), not mi)
    cadd(a, y(0), z(0), z(1)); csub(a, y(4), z(0), z(1))
    caddrot(a, y(2), z(2), z(3), mi); caddrot(a, y(6), z(2), z(3), not mi)
    cfmas(a, y(1), z(6), T, sS, False); cfmas(a, y(5), z(6), T, sS, True)
    cfmasrot(a, y(3), z(7), T + 2, sS, mi); cfmasrot(a, y(7), z(7), T + 2, sS, not mi)

def dft4(a, Z, Y, fwd):
    z = lambda i: Z + 2 * i
    y = lambda i: Y + 2 * i
    cadd(a, y(0), z(0), z(2)); cadd(a, y(1), z(1), z(3))
    csub(a, y(2), z(0), z(2)); csub(a, y(3), z(1), z(3))
    cadd(a, z(0), y(0), y(1)); csub(a, z(2), y(0), y(1))
    caddrot(a, z(1), y(2), y(3), fwd); caddrot(a, z(3), y(2), y(3), not fwd)

def tw_powers(a, W, T):
    w = lambda i: W + 2 * (i - 1)
    cmul(a, w(2), w(1), w(1), T)
    cmul(a, w(3), w(2), w(1), T)
    cmul(a, w(4), w(2), w(2), T)
    cmul(a, w(5), w(4), w(1), T)
    cmul(a, w(6), w(3), w(3), T)
    cmul(a, w(7), w(4), w(3), T)

N_F2 = 224
def gen_k2(a):
    name = 'k2_kernel'
    kernel_header(a, name)
    sWS, sWd = 4, 6
    sW, sTmp, sTmp2, sK = 8, 9, 10, 11
    a(f's_cmp_ge_u32 s2, {N_F2 + 225}')
    a('s_cbranch_scc1 K2_END')
    stamp_begin(a)
    a('s_load_dwordx2 s[4:5], s[0:1], 80')
    a('s_load_dwordx2 s[6:7], s[0:1], 48')
    a('v_lshrrev_b32 v1, 6, v0')
    a('s_nop 0')
    a(f'v_readfirstlane_b32 s{sW}, v1')
    a(f's_cmp_lt_u32 s2, {N_F2}')
    a('s_cbranch_scc1 K2_F2')
    SX, SWT2, SY, STW = 12, 16, 20, 24
    sRe, sIm, sYre, sYim = 28, 29, 30, 31
    sS = 32
    a(f's_sub_u32 s{sK}, s2, {N_F2}')
    a('s_getpc_b64 s[34:35]')
    a('s_add_u32 s34, s34, tblTW@rel32@lo+4')
    a('s_addc_u32 s35, s35, tblTW@rel32@hi+12')
    a('s_waitcnt lgkmcnt(0)')
    srd_off(a, SX, sWS, sWS + 1, WS_X1T, 448 * 8192)
    srd_off(a, SWT2, sWS, sWS + 1, WS_WT, 256 * 7200)
    srd_off(a, SY, sWS, sWS + 1, WS_Y1T, 448 * 4096)
    srd(a, STW, 34, 35, (256 + 32 + 4) * 8)
    a(f's_mov_b32 s{sS}, {hex(f32bits(math.sqrt(0.5)))}')
    a(f's_mov_b32 s{sS+1}, {hex(f32bits(math.sqrt(0.5)))}')
    a(f's_lshl_b32 s{sRe}, s{sK}, 13')
    a(f's_add_u32 s{sIm}, s{sRe}, {224*8192}')
    a(f's_lshl_b32 s{sYre}, s{sK}, 12')
    a(f's_add_u32 s{sYim}, s{sYre}, {224*4096}')
    a(f's_cmp_eq_u32 s{sK}, 0')
    a(f's_cselect_b32 s{sIm}, 0x7f000000, s{sIm}')
    a(f's_cselect_b32 s{sYim}, 0x7f000000, s{sYim}')
    a(f's_cmp_eq_u32 s{sK}, 224')
    a(f's_cselect_b32 s{sIm}, 0x7f000000, s{sIm}')
    a(f's_cselect_b32 s{sYim}, 0x7f000000, s{sYim}')
    Z, Y, T = 16, 32, 48
    TW1, TW2, TW3 = 64, 78, 92
    WP = 112
    vO4, vO2, v8 = 2, 3, 4
    vE1w, vE1r, vE2w, vE2r, vE3w, vE3r = 5, 6, 7, 8, 9, 10
    t0, t1 = 11, 12
    a(f'v_lshlrev_b32 v{vO4}, 2, v0')
    a(f'v_add_u32 v13, 4096, v{vO4}')
    for m in range(8):
        vo = vO4 if m < 4 else 13
        a(f'buffer_load_dword v{Z+2*m}, v{vo}, s[{SX}:{SX+3}], s{sRe} offen offset:{(m&3)*1024}')
        a(f'buffer_load_dword v{Z+2*m+1}, v{vo}, s[{SX}:{SX+3}], s{sIm} offen offset:{(m&3)*1024}')
    a(f'v_lshlrev_b32 v{v8}, 3, v0')
    a(f'buffer_load_dwordx2 {cp(TW1)}, v{v8}, s[{STW}:{STW+3}], 0 offen')
    a(f'v_and_b32 v{t0}, 31, v0')
    a(f'v_lshlrev_b32 v{t0}, 3, v{t0}')
    a(f'buffer_load_dwordx2 {cp(TW2)}, v{t0}, s[{STW}:{STW+3}], 0 offen offset:2048')
    a(f'v_and_b32 v{t1}, 3, v0')
    a(f'v_lshlrev_b32 v{t1}, 3, v{t1}')
    a(f'buffer_load_dwordx2 {cp(TW3)}, v{t1}, s[{STW}:{STW+3}], 0 offen offset:{2048+256}')
    a(f'v_mul_u32_u24 v{t0}, 7200, v0')
    a(f's_lshl_b32 s{sTmp}, s{sK}, 5')
    a(f'buffer_load_dwordx4 {vr(WP,4)}, v{t0}, s[{SWT2}:{SWT2+3}], s{sTmp} offen')
    a(f'buffer_load_dwordx4 {vr(WP+4,4)}, v{t0}, s[{SWT2}:{SWT2+3}], s{sTmp} offen offset:16')
    E1, E1B, E23 = 0, 16384, 32768
    QS = 8 * 288
    a(f'v_mov_b32 v{vE1w}, v{v8}')
    a(f'v_lshrrev_b32 v{t0}, 5, v0')
    a(f'v_and_b32 v{t1}, 31, v0')
    a(f'v_lshlrev_b32 v{vE1r}, 11, v{t0}')
    a(f'v_lshl_add_u32 v{vE1r}, v{t1}, 3, v{vE1r}')
    a(f'v_mul_u32_u24 v{t0}, {QS}, v{t0}')
    a(f'v_add_u32 v{t0}, {E23}, v{t0}')
    a(f'v_lshl_add_u32 v{vE2w}, v{t1}, 3, v{t0}')
    a(f'v_bfe_u32 v{t1}, v0, 2, 3')
    a(f'v_mul_u32_u24 v{vE2r}, 288, v{t1}')
    a(f'v_add_u32 v{vE2r}, v{vE2r}, v{t0}')
    a(f'v_mul_u32_u24 v{vE3w}, 272, v{t1}')
    a(f'v_add_u32 v{vE3w}, v{vE3w}, v{t0}')
    a(f'v_and_b32 v{t1}, 3, v0')
    a(f'v_lshl_add_u32 v{vE2r}, v{t1}, 3, v{vE2r}')
    a(f'v_lshl_add_u32 v{vE3r}, v{t1}, 6, v{vE3w}')
    a(f'v_lshl_add_u32 v{vE3w}, v{t1}, 3, v{vE3w}')
    a(f'v_lshlrev_b32 v{vO2}, 1, v0')
    stamp(a, 1)
    a('s_waitcnt vmcnt(2)')
    stamp(a, 2)
    tw_powers(a, TW1, T); tw_powers(a, TW2, T); tw_powers(a, TW3, T)

    def twiddle(Rs, Rd, TWb, conj):
        a(f'v_mov_b32 v{Rd}, v{Rs}')
        a(f'v_mov_b32 v{Rd+1}, v{Rs+1}')
        for q in range(1, 8):
            cmul1(a, Rd + 2 * q, Rs + 2 * q, TWb + 2 * (q - 1))
        for q in range(1, 8):
            cmul2(a, Rd + 2 * q, Rs + 2 * q, TWb + 2 * (q - 1), Rd + 2 * q, conj)
    def wr64(addr, R, stride, base=0):
        for i in range(8):
            a(f'ds_write_b64 v{addr}, {cp(R+2*i)} offset:{base + i*stride}')
    def rd64(addr, R, stride, base=0):
        for i in range(8):
            a(f'ds_read_b64 {cp(R+2*i)}, v{addr} offset:{base + i*stride}')
    U = 120
    dft8(a, Z, Y, T, sS, True); twiddle(Y, Z, TW1, False)
    wr64(vE1w, Z, 2048, E1)
    a('s_waitcnt lgkmcnt(0)')
    a('s_barrier')
    rd64(vE1r, Z, 256, E1)
    a('s_waitcnt lgkmcnt(0)')
    stamp(a, 3)
    dft8(a, Z, Y, T, sS, True); twiddle(Y, Z, TW2, False)
    wr64(vE2w, Z, 288)
    a('s_waitcnt lgkmcnt(0)')
    rd64(vE2r, Z, 32)
    a('s_waitcnt lgkmcnt(0)')
    dft8(a, Z, Y, T, sS, True); twiddle(Y, Z, TW3, False)
    wr64(vE3w, Z, 32)
    a('s_waitcnt lgkmcnt(0)')
    for i in range(4):
        a(f'ds_read_b128 {vr(Z+4*i,4)}, v{vE3r} offset:{16*i}')
    stamp(a, 4)
    a('s_waitcnt lgkmcnt(0) vmcnt(0)')
    stamp(a, 5)
    dft4(a, Z, Y, True); dft4(a, Z + 8, Y + 8, True)
    for i in range(8):
        a(f'v_lshlrev_b32 v{U+2*i}, 16, v{WP+i}')
        a(f'v_and_b32 v{U+2*i+1}, 0xffff0000, v{WP+i}')
    for i in range(8):
        cmul1(a, Y + 2 * i, Z + 2 * i, U + 2 * i)
    for i in range(8):
        cmul2(a, Y + 2 * i, Z + 2 * i, U + 2 * i, Y + 2 * i, False)
    dft4(a, Y, Z, False); dft4(a, Y + 8, Z + 8, False)
    for i in range(4):
        a(f'ds_write_b128 v{vE3r}, {vr(Y+4*i,4)} offset:{16*i}')
    a('s_waitcnt lgkmcnt(0)')
    rd64(vE3w, Y, 32)
    a('s_waitcnt lgkmcnt(0)')
    twiddle(Y, Z, TW3, True); dft8(a, Z, Y, T, sS, False)
    wr64(vE2r, Y, 32)
    a('s_waitcnt lgkmcnt(0)')
    rd64(vE2w, Y, 288)
    a('s_waitcnt lgkmcnt(0)')
    twiddle(Y, Z, TW2, True); dft8(a, Z, Y, T, sS, False)
    wr64(vE1r, Y, 256, E1B)
    a('s_waitcnt lgkmcnt(0)')
    a('s_barrier')
    rd64(vE1w, Y, 2048, E1B)
    a('s_waitcnt lgkmcnt(0)')
    stamp(a, 6)
    twiddle(Y, Z, TW1, True); dft8(a, Z, Y, T, sS, False)
    for m in range(8):
        a(f'v_cvt_pk_bf16_f32 v{Z+m}, v{Y+2*m}, v{Y+2*m+1}')
    for m in range(8):
        a(f'buffer_store_short v{Z+m}, v{vO2}, s[{SY}:{SY+3}], s{sYre} offen offset:{m*512}')
        a(f'buffer_store_short_d16_hi v{Z+m}, v{vO2}, s[{SY}:{SY+3}], s{sYim} offen offset:{m*512}')
    stamp(a, 7)
    stamp_end(a, sWS, sW, 2, 12, 0x2100000)
    a('s_endpgm')

    a.label('K2_F2')
    SH, SB, SO = 12, 16, 20
    sRB, sCB, sOffP, sOffQ, sM0 = 24, 25, 26, 27, 28
    a(f's_and_b32 s{sRB}, s2, 7')
    a(f's_lshl_b32 s{sRB}, s{sRB}, 2')
    a(f's_lshr_b32 s{sTmp}, s2, 3')
    a(f's_and_b32 s{sTmp2}, s{sTmp}, 3')
    a(f's_add_u32 s{sRB}, s{sRB}, s{sTmp2}')
    a(f's_lshr_b32 s{sCB}, s{sTmp}, 2')
    a('s_waitcnt lgkmcnt(0)')
    srd_off(a, SH, sWS, sWS + 1, WS_H, S * F * 2)
    srd(a, SB, sWd, sWd + 1, F * D * 2)
    srd_off(a, SO, sWS, sWS + 1, WS_B, S * D * 2)
    vL = 1
    vPd, vQd = 2, 4
    vPr, vQr = 6, 8
    t0, t1, t2, t3 = 12, 13, 14, 15
    ACC = 128
    PF = [160, 192]
    QF = [176, 208]
    a(f'v_and_b32 v{vL}, 63, v0')
    a(f'v_lshrrev_b32 v{t0}, 3, v{vL}')
    a(f's_lshl_b32 s{sTmp}, s{sW}, 4')
    a(f'v_add_u32 v{t0}, s{sTmp}, v{t0}')
    a(f's_lshl_b32 s{sTmp}, s{sRB}, 6')
    a(f'v_add_u32 v{t3}, s{sTmp}, v{t0}')
    a(f'v_mul_u32_u24 v{t3}, 3584, v{t3}')
    a(f'v_lshrrev_b32 v{t1}, 4, v{vL}')
    a(f'v_and_b32 v{t2}, 7, v{vL}')
    a(f'v_xor_b32 v{t2}, v{t2}, v{t1}')
    a(f'v_lshl_add_u32 v{vPd}, v{t2}, 4, v{t3}')
    a(f'v_xor_b32 v{t2}, 4, v{t2}')
    a(f'v_lshl_add_u32 v{vPd+1}, v{t2}, 4, v{t3}')
    a(f'v_add_u32 v{vPd+1}, {8*3584}, v{vPd+1}')
    a(f'v_bfe_u32 v{t1}, v{vL}, 4, 1')
    a(f'v_bfe_u32 v{t2}, v{vL}, 1, 2')
    a(f'v_xor_b32 v{t2}, v{t2}, v{t1}')
    a(f'v_and_b32 v{t1}, 1, v{vL}')
    a(f'v_lshlrev_b32 v{t1}, 4, v{t1}')
    a(f'v_lshl_add_u32 v{t1}, v{t2}, 5, v{t1}')
    a(f'v_xor_b32 v{t2}, 64, v{t1}')
    a(f'v_mul_u32_u24 v{t3}, 896, v{t0}')
    a(f's_lshl_b32 s{sTmp}, s{sCB}, 7')
    a(f'v_add_u32 v{t3}, s{sTmp}, v{t3}')
    a(f'v_add_u32 v{vQd}, v{t3}, v{t1}')
    a(f'v_add_u32 v{vQd+1}, v{t3}, v{t2}')
    a(f'v_add_u32 v{vQd+1}, {8*896}, v{vQd+1}')
    a(f's_lshl_b32 s{sM0}, s{sW}, 11')
    NST = 28
    def pieces(st):
        slot = st % 4
        def mk(part, jj):
            def f():
                if part == 0:
                    a(f's_mov_b32 s{sOffP}, {st*128}')
                    a(f's_add_u32 m0, s{sM0}, {slot*16384 + jj*1024}')
                    a('s_nop 0')
                    a(f'buffer_load_dwordx4 v{vPd+jj}, s[{SH}:{SH+3}], s{sOffP} offen lds')
                else:
                    a(f's_mov_b32 s{sOffQ}, {st*64*896}')
                    a(f's_add_u32 m0, s{sM0}, {slot*16384 + 8192 + jj*1024}')
                    a('s_nop 0')
                    a(f'buffer_load_dwordx4 v{vQd+jj}, s[{SB}:{SB+3}], s{sOffQ} offen lds')
            return f
        if 'nodma' in EXP: return []
        return [mk(0, 0), mk(1, 0), mk(0, 1), mk(1, 1)]
    for st in range(4):
        for f in pieces(st):
            f()
    a(f'v_and_b32 v{t0}, 15, v{vL}')
    a(f's_lshr_b32 s{sTmp}, s{sW}, 1')
    a(f's_lshl_b32 s{sTmp}, s{sTmp}, 5')
    a(f'v_add_u32 v{t1}, s{sTmp}, v{t0}')
    a(f'v_lshlrev_b32 v{t1}, 7, v{t1}')
    a(f'v_lshrrev_b32 v{t0}, 1, v{t0}')
    a(f'v_lshrrev_b32 v{t2}, 4, v{vL}')
    a(f'v_xor_b32 v{t0}, v{t0}, v{t2}')
    a(f'v_lshl_add_u32 v{vPr}, v{t0}, 4, v{t1}')
    a(f'v_xor_b32 v{vPr+1}, 64, v{vPr}')
    a(f'v_bfe_u32 v{t0}, v{vL}, 2, 2')
    a(f'v_lshl_add_u32 v{t1}, v{t2}, 3, v{t0}')
    a(f'v_lshlrev_b32 v{t1}, 7, v{t1}')
    a(f'v_and_b32 v{t3}, 3, v{vL}')
    a(f'v_lshl_add_u32 v{t1}, v{t3}, 3, v{t1}')
    a(f'v_lshrrev_b32 v{t0}, 1, v{t0}')
    a(f'v_and_b32 v{t2}, 1, v{t2}')
    a(f'v_lshl_or_b32 v{t0}, v{t2}, 1, v{t0}')
    a(f's_and_b32 s{sTmp}, s{sW}, 1')
    a(f's_lshl_b32 s{sTmp}, s{sTmp}, 1')
    a(f'v_xor_b32 v{t2}, s{sTmp}, v{t0}')
    a(f'v_lshl_add_u32 v{vQr}, v{t2}, 5, v{t1}')
    a(f'v_add_u32 v{vQr}, 8192, v{vQr}')
    a(f'v_xor_b32 v{vQr+1}, 32, v{vQr}')
    for i in range(16):
        a(f'v_mov_b32 v{ACC+i}, 0')
    def reads(st):
        off = (st % 4) * 16384
        R = []
        for h in range(2):
            for mt in range(2):
                R.append(lambda h=h, mt=mt: a(f'ds_read_b128 {vr(PF[st&1]+h*8+mt*4,4)}, v{vPr+h} offset:{off + mt*2048}'))
            for nt in range(2):
                for u in range(2):
                    R.append(lambda h=h, nt=nt, u=u: a(f'ds_read_b64_tr_b16 {vr(QF[st&1]+h*8+nt*4+u*2,2)}, v{vQr+nt} offset:{off + h*4096 + u*512}'))
        if 'nolds' in EXP: return []
        return R
    stamp(a, 1)
    a('s_waitcnt vmcnt(12)')
    a('s_barrier')
    for f in reads(0):
        f()
    for st in range(NST):
        rem = min(NST - 1, st + 3) - (st + 1)
        if st + 1 < NST:
            a(f's_waitcnt vmcnt({4*rem}) lgkmcnt(0)')
            a('s_barrier')
        else:
            a('s_waitcnt lgkmcnt(0)')
        if st % 4 == 0: stamp(a, 2 + st // 4)
        dm = pieces(st + 4) if st + 4 < NST else []
        rd = reads(st + 1) if st + 1 < NST else []
        for h in range(2):
            for mt in range(2):
                for nt in range(2):
                    for _ in range(2):
                        if rd: rd.pop(0)()
                    acc = vr(ACC + mt * 8 + nt * 4, 4)
                    if 'nomfma' not in EXP: a(f'v_mfma_f32_16x16x32_bf16 {acc}, {vr(QF[st&1]+h*8+nt*4,4)}, {vr(PF[st&1]+h*8+mt*4,4)}, {acc}')
                    if dm and nt == 1:
                        dm.pop(0)()
        while rd: rd.pop(0)()
    a('s_nop 7')
    a('s_nop 7')
    stamp(a, 9)
    P = 160
    for mt in range(2):
        for nt in range(2):
            a(f'v_cvt_pk_bf16_f32 v{P+4*mt+2*nt}, v{ACC+mt*8+nt*4}, v{ACC+mt*8+nt*4+1}')
            a(f'v_cvt_pk_bf16_f32 v{P+4*mt+2*nt+1}, v{ACC+mt*8+nt*4+2}, v{ACC+mt*8+nt*4+3}')
    a('s_nop 1')
    for mt in range(2):
        a(f'v_permlane16_swap_b32 v{P+4*mt}, v{P+4*mt+2}')
        a(f'v_permlane16_swap_b32 v{P+4*mt+1}, v{P+4*mt+3}')
    a(f'v_and_b32 v{t1}, 15, v{vL}')
    a(f's_lshl_b32 s{sTmp}, s{sRB}, 6')
    a(f's_lshr_b32 s{sTmp2}, s{sW}, 1')
    a(f's_lshl_b32 s{sTmp2}, s{sTmp2}, 5')
    a(f's_add_u32 s{sTmp}, s{sTmp}, s{sTmp2}')
    a(f'v_add_u32 v{t1}, s{sTmp}, v{t1}')
    a(f'v_mul_u32_u24 v{t1}, 896, v{t1}')
    a(f'v_bfe_u32 v{t2}, v{vL}, 4, 1')
    a(f'v_lshl_add_u32 v{t1}, v{t2}, 5, v{t1}')
    a(f'v_bfe_u32 v{t2}, v{vL}, 5, 1')
    a(f'v_lshl_add_u32 v{t1}, v{t2}, 4, v{t1}')
    a(f's_lshl_b32 s{sTmp}, s{sCB}, 7')
    a(f's_and_b32 s{sTmp2}, s{sW}, 1')
    a(f's_lshl_b32 s{sTmp2}, s{sTmp2}, 6')
    a(f's_add_u32 s{sTmp}, s{sTmp}, s{sTmp2}')
    a(f's_add_u32 s{sTmp2}, s{sTmp}, {16*896}')
    a(f'buffer_store_dwordx4 {vr(P,4)}, v{t1}, s[{SO}:{SO+3}], s{sTmp} offen')
    a(f'buffer_store_dwordx4 {vr(P+4,4)}, v{t1}, s[{SO}:{SO+3}], s{sTmp2} offen')
    stamp(a, 10)
    stamp_end(a, sWS, sW, 2, 12, 0x2100000)
    a.label('K2_END')
    a('s_endpgm')
    kernel_desc(a, name, 224)

def gen_k3(a):
    name = 'k3_kernel'
    kernel_header(a, name)
    sWS, sOut = 4, 6
    sW, sTmp, sTmp2, sRB, sCB, sOffY, sOffG, sM0 = 8, 9, 10, 11, 36, 37, 38, 39
    SY, SG, SBb, SGT, SO = 12, 16, 20, 24, 28
    a('s_cmp_ge_u32 s2, 224')
    a('s_cbranch_scc1 K3_END')
    stamp_begin(a)
    a('s_load_dwordx2 s[4:5], s[0:1], 80')
    a('s_load_dwordx2 s[6:7], s[0:1], 64')
    a('v_lshrrev_b32 v1, 6, v0')
    a('s_nop 0')
    a(f'v_readfirstlane_b32 s{sW}, v1')
    a(f's_and_b32 s{sRB}, s2, 7')
    a(f's_lshl_b32 s{sRB}, s{sRB}, 2')
    a(f's_lshr_b32 s{sTmp}, s2, 3')
    a(f's_and_b32 s{sTmp2}, s{sTmp}, 3')
    a(f's_add_u32 s{sRB}, s{sRB}, s{sTmp2}')
    a(f's_lshr_b32 s{sCB}, s{sTmp}, 2')
    a('s_getpc_b64 s[34:35]')
    a('s_add_u32 s34, s34, tblG@rel32@lo+4')
    a('s_addc_u32 s35, s35, tblG@rel32@hi+12')
    a('s_waitcnt lgkmcnt(0)')
    srd_off(a, SY, sWS, sWS + 1, WS_Y1T, 448 * 4096)
    srd(a, SG, 34, 35, 448 * 896)
    srd_off(a, SBb, sWS, sWS + 1, WS_B, S * D * 2)
    srd_off(a, SGT, sWS, sWS + 1, WS_GATE, 2048 * 4)
    srd(a, SO, sOut, sOut + 1, S * D * 2)
    vL = 1
    vYd, vGd = 2, 4
    vYr, vGr = 6, 8
    vO, vGo = 10, 11
    t0, t1, t2, t3 = 12, 13, 14, 15
    ACC = 32
    YF = [48, 56]
    GF = [64, 72]
    BV = 80
    GV = 88
    a(f'v_and_b32 v{vL}, 63, v0')
    a(f'v_lshrrev_b32 v{t0}, 3, v{vL}')
    a(f's_lshl_b32 s{sTmp}, s{sW}, 4')
    a(f'v_add_u32 v{t0}, s{sTmp}, v{t0}')
    a(f'v_bfe_u32 v{t1}, v{vL}, 4, 1')
    a(f'v_bfe_u32 v{t2}, v{vL}, 1, 2')
    a(f'v_xor_b32 v{t2}, v{t2}, v{t1}')
    a(f'v_and_b32 v{t1}, 1, v{vL}')
    a(f'v_lshlrev_b32 v{t1}, 4, v{t1}')
    a(f'v_lshl_add_u32 v{t1}, v{t2}, 5, v{t1}')
    a(f'v_xor_b32 v{t2}, 64, v{t1}')
    a(f'v_lshlrev_b32 v{t3}, 12, v{t0}')
    a(f's_lshl_b32 s{sTmp}, s{sRB}, 7')
    a(f'v_add_u32 v{t3}, s{sTmp}, v{t3}')
    a(f'v_add_u32 v{vYd}, v{t3}, v{t1}')
    a(f'v_add_u32 v{vYd+1}, v{t3}, v{t2}')
    a(f'v_add_u32 v{vYd+1}, {8*4096}, v{vYd+1}')
    a(f'v_mul_u32_u24 v{t3}, 896, v{t0}')
    a(f's_lshl_b32 s{sTmp}, s{sCB}, 7')
    a(f'v_add_u32 v{t3}, s{sTmp}, v{t3}')
    a(f'v_add_u32 v{vGd}, v{t3}, v{t1}')
    a(f'v_add_u32 v{vGd+1}, v{t3}, v{t2}')
    a(f'v_add_u32 v{vGd+1}, {8*896}, v{vGd+1}')
    a(f's_lshl_b32 s{sM0}, s{sW}, 11')
    for st in range(7):
        a(f's_mov_b32 s{sOffY}, {st*64*4096}')
        a(f's_mov_b32 s{sOffG}, {st*64*896}')
        for j in range(2):
            a(f's_add_u32 m0, s{sM0}, {st*16384 + j*1024}')
            a('s_nop 0')
            a(f'buffer_load_dwordx4 v{vYd+j}, s[{SY}:{SY+3}], s{sOffY} offen lds')
            a(f's_add_u32 m0, s{sM0}, {st*16384 + 8192 + j*1024}')
            a('s_nop 0')
            a(f'buffer_load_dwordx4 v{vGd+j}, s[{SG}:{SG+3}], s{sOffG} offen lds')
    a(f'v_and_b32 v{t1}, 15, v{vL}')
    a(f's_lshl_b32 s{sTmp}, s{sRB}, 6')
    a(f's_lshr_b32 s{sTmp2}, s{sW}, 1')
    a(f's_lshl_b32 s{sTmp2}, s{sTmp2}, 5')
    a(f's_add_u32 s{sTmp}, s{sTmp}, s{sTmp2}')
    a(f'v_add_u32 v{t1}, s{sTmp}, v{t1}')
    a(f'v_lshlrev_b32 v{vGo}, 2, v{t1}')
    a(f'v_mul_u32_u24 v{t1}, 896, v{t1}')
    a(f'v_bfe_u32 v{t2}, v{vL}, 4, 1')
    a(f'v_lshl_add_u32 v{t1}, v{t2}, 5, v{t1}')
    a(f'v_bfe_u32 v{t2}, v{vL}, 5, 1')
    a(f'v_lshl_add_u32 v{t1}, v{t2}, 4, v{t1}')
    a(f's_lshl_b32 s{sTmp}, s{sCB}, 7')
    a(f's_and_b32 s{sTmp2}, s{sW}, 1')
    a(f's_lshl_b32 s{sTmp2}, s{sTmp2}, 6')
    a(f's_add_u32 s{sTmp}, s{sTmp}, s{sTmp2}')
    a(f'v_add_u32 v{vO}, s{sTmp}, v{t1}')
    a(f's_mov_b32 s{sOffY}, {16*896}')
    a(f'buffer_load_dwordx4 {vr(BV,4)}, v{vO}, s[{SBb}:{SBb+3}], 0 offen')
    a(f'buffer_load_dwordx4 {vr(BV+4,4)}, v{vO}, s[{SBb}:{SBb+3}], s{sOffY} offen')
    a(f'buffer_load_dword v{GV}, v{vGo}, s[{SGT}:{SGT+3}], 0 offen')
    a(f'buffer_load_dword v{GV+1}, v{vGo}, s[{SGT}:{SGT+3}], 0 offen offset:64')
    NE = 4
    a(f'v_lshrrev_b32 v{t2}, 4, v{vL}')
    a(f'v_bfe_u32 v{t0}, v{vL}, 2, 2')
    a(f'v_lshl_add_u32 v{t1}, v{t2}, 3, v{t0}')
    a(f'v_lshlrev_b32 v{t1}, 7, v{t1}')
    a(f'v_and_b32 v{t3}, 3, v{vL}')
    a(f'v_lshl_add_u32 v{t1}, v{t3}, 3, v{t1}')
    a(f'v_lshrrev_b32 v{t0}, 1, v{t0}')
    a(f'v_and_b32 v{t2}, 1, v{t2}')
    a(f'v_lshl_or_b32 v{t0}, v{t2}, 1, v{t0}')
    a(f's_and_b32 s{sTmp}, s{sW}, 2')
    a(f'v_xor_b32 v{t2}, s{sTmp}, v{t0}')
    a(f'v_lshl_add_u32 v{vYr}, v{t2}, 5, v{t1}')
    a(f'v_xor_b32 v{vYr+1}, 32, v{vYr}')
    a(f's_and_b32 s{sTmp}, s{sW}, 1')
    a(f's_lshl_b32 s{sTmp}, s{sTmp}, 1')
    a(f'v_xor_b32 v{t2}, s{sTmp}, v{t0}')
    a(f'v_lshl_add_u32 v{vGr}, v{t2}, 5, v{t1}')
    a(f'v_add_u32 v{vGr}, 8192, v{vGr}')
    a(f'v_xor_b32 v{vGr+1}, 32, v{vGr}')
    vYr2, vGr2 = 16, 18
    for i in range(2):
        a(f'v_add_u32 v{vYr2+i}, 0x10000, v{vYr+i}')
        a(f'v_add_u32 v{vGr2+i}, 0x10000, v{vGr+i}')
    for i in range(16):
        a(f'v_mov_b32 v{ACC+i}, 0')
    stamp(a, 1)
    for st in range(7):
        a(f's_waitcnt vmcnt({(6-st)*4 + NE})')
        a('s_barrier')
        stamp(a, 2 + st)
        yb, gb, off = (vYr, vGr, st * 16384) if st < 4 else (vYr2, vGr2, (st - 4) * 16384)
        for h in range(2):
            for t in range(2):
                for u in range(2):
                    a(f'ds_read_b64_tr_b16 {vr(YF[h]+t*4+u*2,2)}, v{yb+t} offset:{off + h*4096 + u*512}')
                    a(f'ds_read_b64_tr_b16 {vr(GF[h]+t*4+u*2,2)}, v{gb+t} offset:{off + h*4096 + u*512}')
        for h in range(2):
            a(f's_waitcnt lgkmcnt({8 if h == 0 else 0})')
            for mt in range(2):
                for nt in range(2):
                    acc = vr(ACC + mt * 8 + nt * 4, 4)
                    a(f'v_mfma_f32_16x16x32_bf16 {acc}, {vr(GF[h]+nt*4,4)}, {vr(YF[h]+mt*4,4)}, {acc}')
    stamp(a, 9)
    a('s_waitcnt vmcnt(0)')
    a('s_nop 7')
    for mt in range(2):
        for r in range(4):
            a(f'v_permlane16_swap_b32 v{ACC+mt*8+r}, v{ACC+mt*8+4+r}')
    OM = 90
    for mt in range(2):
        a(f'v_sub_f32 v{OM+mt}, 1.0, v{GV+mt}')
    a(f'v_cvt_pk_bf16_f32 v{t0}, v{OM}, v{OM+1}')
    a(f'v_lshlrev_b32 v{OM}, 16, v{t0}')
    a(f'v_and_b32 v{OM+1}, 0xffff0000, v{t0}')
    T = 48
    for mt in range(2):
        A_ = ACC + mt * 8
        P = 92 + mt * 4
        G2, O2 = 100 + mt * 4, 102 + mt * 4
        a(f'v_mov_b32 v{G2}, v{GV+mt}'); a(f'v_mov_b32 v{G2+1}, v{GV+mt}')
        a(f'v_mov_b32 v{O2}, v{OM+mt}'); a(f'v_mov_b32 v{O2+1}, v{OM+mt}')
        for p in range(4):
            round_bf16_pair(a, A_ + 2 * p, A_ + 2 * p + 1, A_ + 2 * p, A_ + 2 * p + 1, T + p)
        for p in range(4):
            a(f'v_pk_mul_f32 {cp(A_+2*p)}, {cp(A_+2*p)}, {cp(G2)}')
        for p in range(4):
            round_bf16_pair(a, A_ + 2 * p, A_ + 2 * p + 1, A_ + 2 * p, A_ + 2 * p + 1, T + p)
        for p in range(4):
            a(f'v_lshlrev_b32 v{T+8+2*p}, 16, v{BV+mt*4+p}')
            a(f'v_and_b32 v{T+9+2*p}, 0xffff0000, v{BV+mt*4+p}')
        for p in range(4):
            a(f'v_pk_mul_f32 {cp(T+8+2*p)}, {cp(T+8+2*p)}, {cp(O2)}')
        for p in range(4):
            round_bf16_pair(a, T + 8 + 2 * p, T + 9 + 2 * p, T + 8 + 2 * p, T + 9 + 2 * p, T + p)
        for p in range(4):
            a(f'v_pk_add_f32 {cp(A_+2*p)}, {cp(A_+2*p)}, {cp(T+8+2*p)}')
        for p in range(4):
            a(f'v_cvt_pk_bf16_f32 v{P+p}, v{A_+2*p}, v{A_+2*p+1}')
        if mt == 0:
            a(f'buffer_store_dwordx4 {vr(P,4)}, v{vO}, s[{SO}:{SO+3}], 0 offen')
        else:
            a(f'buffer_store_dwordx4 {vr(P,4)}, v{vO}, s[{SO}:{SO+3}], s{sOffY} offen')
    stamp(a, 10)
    stamp_end(a, sWS, sW, 2, 12, 0x2200000)
    a.label('K3_END')
    a('s_endpgm')
    kernel_desc(a, name, 112)

def gen_tables(a):
    a.raw('.altmacro')
    for i in range(448):
        c = math.cos(2 * math.pi * i / 448); s = math.sin(2 * math.pi * i / 448)
        if i % 112 == 0:
            c = [1.0, 0.0, -1.0, 0.0][i // 112]; s = [0.0, 1.0, 0.0, -1.0][i // 112]
        sc = 1.0 / (448 * 2048)
        a.raw(f'.set CF_{i}, {bf16bits(c)}')
        a.raw(f'.set SF_{i}, {bf16bits(-s)}')
        a.raw(f'.set CG1_{i}, {bf16bits(c*sc)}')
        a.raw(f'.set CG2_{i}, {bf16bits(2*c*sc)}')
        a.raw(f'.set SG_{i}, {bf16bits(-2*s*sc)}')
    for n in ('CF', 'SF', 'CG1', 'CG2', 'SG'):
        a.raw(f'.macro em{n} idx')
        a.raw(f'  .short {n}_\\idx')
        a.raw('.endm')
    a.raw('.section .rodata,"a"')
    a.raw('.p2align 8')
    a.raw('.type tblF,@object')
    a.label('tblF')
    a.raw('''.set td, 0
.rept 448
  .set tc, 0
  .rept 225
    emCF %((td*tc)%448)
    .set tc, tc+1
  .endr
  .set tc, 1
  .rept 223
    emSF %((td*tc)%448)
    .set tc, tc+1
  .endr
  .fill 64, 2, 0
  .set td, td+1
.endr''')
    a.raw('.p2align 8')
    a.raw('.type tblG,@object')
    a.label('tblG')
    a.raw('''.set td, 0
.rept 448
  emCG1 0
.endr
.set tc, 1
.rept 223
  .set td, 0
  .rept 448
    emCG2 %((td*tc)%448)
    .set td, td+1
  .endr
  .set tc, tc+1
.endr
.set td, 0
.rept 448
  emCG1 %((td*224)%448)
  .set td, td+1
.endr
.set tc, 1
.rept 223
  .set td, 0
  .rept 448
    emSG %((td*tc)%448)
    .set td, td+1
  .endr
  .set tc, tc+1
.endr''')

def gen_tw(a):
    a.raw('.p2align 8')
    a.raw('.type tblTW,@object')
    a.label('tblTW')
    def ent(n, N):
        an = -2 * math.pi * n / N
        return f32bits(math.cos(an)), f32bits(math.sin(an))
    vals = [ent(T, 2048) for T in range(256)] + [ent(j, 256) for j in range(32)] + [ent(j, 32) for j in range(4)]
    for i in range(0, len(vals), 4):
        a.raw('  .long ' + ', '.join(f'{hex(x)}, {hex(y)}' for x, y in vals[i:i+4]))

HEADER = open('cdna_kernels/' + NAME + '.s.ref').read().split('; Override launch')[0]

def main(out):
    a = Asm()
    a.raw(HEADER.rstrip('\n'))
    launches = [('k1_kernel', (256, 1, 1), (512, 1, 1), 147456 + 8192),
                ('k2_kernel', (N_F2 + 225, 1, 1), (256, 1, 1), 65536),
                ('k3_kernel', (224, 1, 1), (256, 1, 1), 114688)]
    for k, g, b, l in launches:
        a.raw(f'; @launch kernel={k} grid=({g[0]},{g[1]},{g[2]}) block=({b[0]},{b[1]},{b[2]}) lds={l}')
    a.raw('.amdgcn_target "amdgcn-amd-amdhsa--gfx950"')
    gen_k1(a)
    gen_k2(a)
    gen_k3(a)
    gen_tables(a)
    gen_tw(a)
    open(out, 'w').write('\n'.join(a.L) + '\n')

if __name__ == '__main__':
    if len(sys.argv) > 2 and sys.argv[2].startswith('stamp'): STAMP = True
    if len(sys.argv) > 2 and sys.argv[2] == 'stamp2': STAMP2 = True
    main(sys.argv[1] if len(sys.argv) > 1 else 'k.s')
```

```python
import sys
from gen import *
def gen_st(a, name, nwg_active, nw, n, seg, stride, base, pair):
    kernel_header(a, name)
    a(f's_cmp_ge_u32 s2, {nwg_active}')
    a(f's_cbranch_scc1 {name}_E')
    a('s_load_dwordx2 s[4:5], s[0:1], 80')
    a('v_lshrrev_b32 v1, 6, v0')
    a('s_nop 0')
    a('v_readfirstlane_b32 s20, v1')
    a('v_and_b32 v2, 63, v0')
    lpr = seg // 16; sh = lpr.bit_length() - 1; rpi = 64 // lpr
    a(f'v_lshrrev_b32 v3, {sh}, v2')
    a(f'v_and_b32 v4, {lpr-1}, v2')
    a(f's_mov_b32 s21, {stride}')
    a('v_mul_lo_u32 v3, v3, s21')
    a('v_lshl_add_u32 v3, v4, 4, v3')
    per_wave = rpi * stride * (n if not pair else 1)
    a(f's_mul_i32 s22, s2, {nw}')
    a('s_add_u32 s22, s22, s20')
    a(f's_mul_i32 s22, s22, {per_wave}')
    a(f's_add_u32 s22, s22, {base}')
    a('v_add_u32 v3, s22, v3')
    a('s_waitcnt lgkmcnt(0)')
    srd(a, 8, 4, 5, 250 << 20)
    a('s_barrier')
    a('s_memtime s[40:41]')
    for d in range(n):
        off = d * seg if pair else d * rpi * stride
        a(f's_mov_b32 s27, {off}')
        a(f'buffer_store_dwordx4 v[8:11], v3, s[8:11], s27 offen')
    a('s_waitcnt vmcnt(0)')
    a('s_barrier')
    a('s_memtime s[42:43]')
    a('s_waitcnt lgkmcnt(0)')
    a('s_sub_u32 s42, s42, s40')
    a('v_mov_b32 v5, s42')
    idx = int(name[2:name.index('_')])
    a(f's_lshl_b32 s27, s2, 2')
    a(f's_add_u32 s27, s27, {(240<<20) + idx*4096}')
    a('v_mov_b32 v6, 0')
    a('s_mov_b64 exec, 1')
    a('buffer_store_dword v5, v6, s[8:11], s27 offen')
    a.label(name + '_E')
    a('s_endpgm')
    kernel_desc(a, name, 32)
a = Asm()
a.raw(HEADER.rstrip('\n'))
cfgs = []; i = 0
for nwg in (32, 256):
    for (seg, stride, pair) in ((64, 8192, True), (64, 8192, False) , (128, 8192, True), (256, 8192, True), (1024, 1024, False), (64, 3584, True), (32, 8192, True)):
        cfgs.append((f'st{i}_kernel', nwg, 8, 16, seg, stride, 0, pair)); i += 1
for c in cfgs:
    a.raw(f'; @launch kernel={c[0]} grid=(256,1,1) block=(512,1,1) lds=0')
a.raw('.amdgcn_target "amdgcn-amd-amdhsa--gfx950"')
for c in cfgs:
    gen_st(a, *c)
open('st.s', 'w').write('\n'.join(a.L) + '\n')
import json; json.dump(cfgs, open('st.json', 'w'))
```

```python
import sys
from gen import *
def gen_bw(a, name, share, nw, per, rowbytes, stride, base):
    kernel_header(a, name)
    a('s_memtime s[40:41]')
    a('s_load_dwordx2 s[4:5], s[0:1], 80')
    a('v_lshrrev_b32 v1, 6, v0')
    a('s_nop 0')
    a('v_readfirstlane_b32 s20, v1')
    a('v_and_b32 v2, 63, v0')
    lpr = rowbytes // 16
    sh = lpr.bit_length() - 1
    rpi = 64 // lpr
    a(f'v_lshrrev_b32 v3, {sh}, v2')
    a(f'v_and_b32 v4, {lpr-1}, v2')
    a(f's_mov_b32 s21, {stride}')
    a('v_mul_lo_u32 v3, v3, s21')
    a('v_lshl_add_u32 v3, v4, 4, v3')
    regbytes = nw * per * rpi * stride
    a('s_lshr_b32 s22, s2, 3')
    a(f's_lshr_b32 s22, s22, {share.bit_length()-1}')
    a('s_lshl_b32 s22, s22, 3')
    a('s_and_b32 s23, s2, 7')
    a('s_add_u32 s22, s22, s23')
    if share == 256:
        a('s_mov_b32 s22, 0')
    a(f's_mul_i32 s22, s22, {regbytes}')
    a(f's_add_u32 s22, s22, {base}')
    a(f's_mul_i32 s23, s20, {rpi*stride}')
    a('s_add_u32 s22, s22, s23')
    a('v_add_u32 v3, s22, v3')
    a('s_waitcnt lgkmcnt(0)')
    srd(a, 8, 4, 5, 250 << 20)
    a(f's_lshl_b32 s24, s20, 10')
    for d in range(per):
        a(f's_mov_b32 s27, {d*nw*rpi*stride}')
        a(f's_add_u32 m0, s24, {d*nw*1024}')
        a('s_nop 0')
        a(f'buffer_load_dwordx4 v3, s[8:11], s27 offen lds')
    a('s_waitcnt vmcnt(0)')
    a('s_barrier')
    a('s_memtime s[42:43]')
    a('s_waitcnt lgkmcnt(0)')
    a('s_sub_u32 s42, s42, s40')
    a('v_mov_b32 v5, s42')
    idx = int(name[2:name.index('_')])
    a(f's_lshl_b32 s27, s2, 2')
    a(f's_add_u32 s27, s27, {(240<<20) + idx*4096}')
    a('v_mov_b32 v6, 0')
    a('s_mov_b64 exec, 1')
    a('buffer_store_dword v5, v6, s[8:11], s27 offen')
    a('s_endpgm')
    kernel_desc(a, name, 32)
```

```python
import math, struct, sys
import numpy as np

NAME = 'gated_mix__spectral_gfnet__glu_gated_geglu__prompt'
S, D, F = 2048, 448, 1792
WS_H    = 0x0000000
WS_X1T  = 0x0800000
WS_WT   = 0x0C00000
WS_GATE = 0x0E00000
WS_Y1T  = 0x0F00000
WS_B    = 0x1100000

def f32bits(x):
    return struct.unpack('<I', struct.pack('<f', x))[0]

def bf16bits(x):
    u = f32bits(np.float32(x))
    r = (u + 0x7FFF + ((u >> 16) & 1)) >> 16
    return r & 0xFFFF

class Asm:
    def __init__(self):
        self.L = []
    def __call__(self, s):
        import re
        m = re.search(r'offset:(\d+)', s)
        if m:
            lim = 4095 if s.startswith('buffer_') else 65535
            assert int(m.group(1)) <= lim, s
        self.L.append('  ' + s)
    def label(self, s):
        self.L.append(s + ':')
    def raw(self, s):
        self.L.append(s)
    def c(self, s):
        self.L.append('  ; ' + s)

def vr(b, n=1):
    return f'v{b}' if n == 1 else f'v[{b}:{b+n-1}]'
def sr(b, n=1):
    return f's{b}' if n == 1 else f's[{b}:{b+n-1}]'

def srd(a, d, lo, hi, nbytes):
    a(f's_mov_b32 s{d}, s{lo}')
    a(f's_and_b32 s{d+1}, s{hi}, 0xffff')
    a(f's_mov_b32 s{d+2}, {nbytes}')
    a(f's_mov_b32 s{d+3}, 0x00020000')

def srd_off(a, d, lo, hi, off, nbytes):
    a(f's_add_u32 s{d}, s{lo}, {off}')
    a(f's_addc_u32 s{d+1}, s{hi}, 0')
    a(f's_and_b32 s{d+1}, s{d+1}, 0xffff')
    a(f's_mov_b32 s{d+2}, {nbytes}')
    a(f's_mov_b32 s{d+3}, 0x00020000')

def kernel_header(a, name):
    a.raw('.text')
    a.raw(f'.globl {name}')
    a.raw('.p2align 8')
    a.raw(f'.type {name},@function')
    a.label(name)

def kernel_desc(a, name, vgpr, sgpr=102):
    acc = (vgpr + 3) // 4 * 4
    a.raw('.section .rodata,"a"')
    a.raw('.p2align 6')
    a.raw(f'.amdhsa_kernel {name}')
    a.raw(f'  .amdhsa_next_free_vgpr {vgpr}')
    a.raw(f'  .amdhsa_next_free_sgpr {sgpr}')
    a.raw(f'  .amdhsa_accum_offset {acc}')
    a.raw('  .amdhsa_group_segment_fixed_size 0')
    a.raw('  .amdhsa_kernarg_size 88')
    a.raw('  .amdhsa_user_sgpr_count 2')
    a.raw('  .amdhsa_user_sgpr_kernarg_segment_ptr 1')
    a.raw('  .amdhsa_system_sgpr_workgroup_id_x 1')
    a.raw('  .amdhsa_float_denorm_mode_32 3')
    a.raw('.end_amdhsa_kernel')

STAMP = False
STAMP2 = False
import os
EXP = os.environ.get('EXP', '')
def stamp(a, idx):
    if STAMP:
        a(f's_memtime s[{76+2*idx}:{77+2*idx}]')
def stamp_flush(a, n, sWSlo, sW, scr_v, srd_s, extra=None, region=0x2000000):
    if not STAMP: return
    a('s_waitcnt lgkmcnt(0)')
    srd_off(a, srd_s, sWSlo, sWSlo+1, region, 0x100000)
    a(f's_lshl_b32 s74, s2, 3')
    a(f's_add_u32 s74, s74, s{sW}')
    a(f's_lshl_b32 s74, s74, 6')
    a(f'v_mov_b32 v{scr_v}, s74')
    a('s_mov_b64 exec, 1')
    for i in range(n):
        a(f'v_mov_b32 v{scr_v+1}, s{76+2*i}')
        a(f'buffer_store_dword v{scr_v+1}, v{scr_v}, s[{srd_s}:{srd_s+3}], 0 offen offset:{4*i}')
        a('s_nop 1')
    if extra is not None:
        a(f'v_mov_b32 v{scr_v+1}, s{extra}')
        a(f'buffer_store_dword v{scr_v+1}, v{scr_v}, s[{srd_s}:{srd_s+3}], 0 offen offset:60')
    a('s_mov_b64 exec, -1')
def stamp_begin(a):
    if STAMP:
        stamp(a, 0)
        a('s_memrealtime s[100:101]')
def stamp_end(a, sWS, sW, scr_v, srd_s, region):
    if not STAMP: return
    a('s_waitcnt vmcnt(0)')
    stamp(a, 11)
    a('s_waitcnt lgkmcnt(0)')
    a('s_mov_b32 s75, s100')
    a('s_memrealtime s[100:101]')
    a('s_waitcnt lgkmcnt(0)')
    a('s_sub_u32 s74, s100, s75')
    a('s_add_u32 s100, s74, s76')
    stamp_flush(a, 13, sWS, sW, scr_v, srd_s, extra=75, region=region)
LOG2E = 1.4426950408889634
GC0 = -2.0 * LOG2E * math.sqrt(2.0 / math.pi)
GC1 = GC0 * 0.044715

def round_bf16_pair(a, d0, d1, s0, s1, tmp):
    a(f'v_cvt_pk_bf16_f32 v{tmp}, v{s0}, v{s1}')
    a(f'v_lshlrev_b32 v{d0}, 16, v{tmp}')
    a(f'v_and_b32 v{d1}, 0xffff0000, v{tmp}')

def gen_k1(a):
    name = 'k1_kernel'
    kernel_header(a, name)
    sX, sWg, sWu, sWr, sWi, sGW, sWS = 4, 6, 8, 10, 12, 14, 16
    SA, SBG, SBU, SO = 20, 24, 28, 32
    SWR, SWI, SWT, SGWs, SGATE = 36, 40, 44, 48, 52
    sCB, sRB, sW, sStride, sKB, sTmp, sTmp2, sIsD = 56, 57, 58, 59, 60, 61, 62, 63
    sM0A, sM0B = 64, 65
    sOffA, sOffB = 66, 67
    sMt = 68
    sC = 98
    a('s_cmp_ge_u32 s2, 256')
    a('s_cbranch_scc1 K1_END')
    stamp(a, 0)
    if STAMP: a('s_memrealtime s[100:101]')
    a('s_load_dwordx2 s[4:5], s[0:1], 0')
    a('s_load_dwordx2 s[6:7], s[0:1], 32')
    a('s_load_dwordx2 s[8:9], s[0:1], 40')
    a('s_load_dwordx2 s[10:11], s[0:1], 8')
    a('s_load_dwordx2 s[12:13], s[0:1], 16')
    a('s_load_dwordx2 s[14:15], s[0:1], 56')
    a('s_load_dwordx2 s[16:17], s[0:1], 80')
    a('s_load_dwordx2 s[72:73], s[0:1], 48')
    a('v_lshrrev_b32 v1, 6, v0')
    a('s_nop 0')
    a(f'v_readfirstlane_b32 s{sW}, v1')
    sG, sJ = 74, 75
    a(f's_and_b32 s{sRB}, s2, 1')
    a(f's_lshl_b32 s{sRB}, s{sRB}, 2')
    a(f's_lshr_b32 s{sJ}, s2, 3')
    a(f's_and_b32 s{sTmp}, s{sJ}, 3')
    a(f's_add_u32 s{sRB}, s{sRB}, s{sTmp}')
    a(f's_bfe_u32 s{sG}, s2, 0x20001')
    a(f's_lshr_b32 s{sTmp2}, s2, 5')
    a(f's_getpc_b64 s[18:19]')
    a(f's_add_u32 s18, s18, tblF@rel32@lo+4')
    a(f's_addc_u32 s19, s19, tblF@rel32@hi+12')
    a('s_waitcnt lgkmcnt(0)')
    if STAMP2: stamp(a, 3)
    srd(a, SA, sX, sX + 1, S * D * 2)
    srd(a, SWR, sWr, sWr + 1, S * 225 * 2)
    srd(a, SWI, sWi, sWi + 1, S * 225 * 2)
    srd(a, SGWs, sGW, sGW + 1, D * 2)
    srd_off(a, SWT, sWS, sWS + 1, WS_WT, 225 * 8192)
    srd_off(a, SGATE, sWS, sWS + 1, WS_GATE, 2048 * 4)
    STC = 88
    a('s_getpc_b64 s[28:29]')
    a('s_add_u32 s28, s28, tblG@rel32@lo+4')
    a('s_addc_u32 s29, s29, tblG@rel32@hi+12')
    bufs = [(72, F*D*2), (28, 448*896 + 2560)] + [(sX, 0)] * 6
    a(f's_mov_b32 s{STC}, s{bufs[0][0]}')
    a(f's_mov_b32 s{STC+1}, s{bufs[0][0]+1}')
    a(f's_mov_b32 s{STC+2}, {bufs[0][1]}')
    a(f's_mov_b32 s{sOffA}, {(bufs[0][1] + 255)//256}')
    for i in range(1, 3):
        a(f's_cmp_{"eq" if i == 1 else "ge"}_u32 s{sW}, {i}')
        a(f's_cselect_b32 s{STC}, s{bufs[i][0]}, s{STC}')
        a(f's_cselect_b32 s{STC+1}, s{bufs[i][0]+1}, s{STC+1}')
        a(f's_cselect_b32 s{STC+2}, {bufs[i][1]}, s{STC+2}')
        a(f's_cselect_b32 s{sOffA}, {(bufs[i][1] + 255)//256}, s{sOffA}')
    a(f's_and_b32 s{STC+1}, s{STC+1}, 0xffff')
    a(f's_mov_b32 s{STC+3}, 0x00020000')
    a(f'v_and_b32 v1, 63, v0')
    a(f'v_lshlrev_b32 v30, 7, v1')
    a(f'v_mov_b32 v3, 0x7f000000')
    a(f'v_cmp_gt_u32 vcc, s{sOffA}, v30')
    a(f's_mul_i32 s87, s{sOffA}, s2')
    a(f's_and_b32 s87, s87, 0xfffffffc')
    a(f'v_cndmask_b32 v30, v3, v30, vcc')
    a(f's_cmp_ge_u32 s{sTmp2}, 7')
    a(f's_cselect_b32 s{sIsD}, 1, 0')
    a('s_cbranch_scc1 K1_SETUP_DFT')
    a(f's_mul_i32 s{sCB}, s{sG}, 7')
    a(f's_add_u32 s{sCB}, s{sCB}, s{sTmp2}')
    a(f's_lshl_b32 s{sTmp}, s{sCB}, 7')
    a(f's_add_u32 s{SBG}, s{sWg}, s{sTmp}')
    a(f's_addc_u32 s{SBG+1}, s{sWg+1}, 0')
    a(f's_and_b32 s{SBG+1}, s{SBG+1}, 0xffff')
    a(f's_sub_u32 s{SBG+2}, {D*F*2}, s{sTmp}')
    a(f's_mov_b32 s{SBG+3}, 0x00020000')
    a(f's_add_u32 s{SBU}, s{sWu}, s{sTmp}')
    a(f's_addc_u32 s{SBU+1}, s{sWu+1}, 0')
    a(f's_and_b32 s{SBU+1}, s{SBU+1}, 0xffff')
    a(f's_sub_u32 s{SBU+2}, {D*F*2}, s{sTmp}')
    a(f's_mov_b32 s{SBU+3}, 0x00020000')
    a(f's_mov_b32 s{sStride}, 3584')
    srd_off(a, SO, sWS, sWS + 1, WS_H, S * F * 2)
    a('s_branch K1_SETUP_DONE')
    a.label('K1_SETUP_DFT')
    a(f's_mov_b32 s{sCB}, s{sG}')
    a(f's_lshl_b32 s{sTmp}, s{sCB}, 8')
    a(f's_add_u32 s{SBG}, s18, s{sTmp}')
    a(f's_addc_u32 s{SBG+1}, s19, 0')
    a(f's_and_b32 s{SBG+1}, s{SBG+1}, 0xffff')
    a(f's_sub_u32 s{SBG+2}, {448*1024}, s{sTmp}')
    a(f's_mov_b32 s{SBG+3}, 0x00020000')
    a(f's_add_u32 s{sTmp}, s{sTmp}, 128')
    a(f's_add_u32 s{SBU}, s18, s{sTmp}')
    a(f's_addc_u32 s{SBU+1}, s19, 0')
    a(f's_and_b32 s{SBU+1}, s{SBU+1}, 0xffff')
    a(f's_sub_u32 s{SBU+2}, {448*1024}, s{sTmp}')
    a(f's_mov_b32 s{SBU+3}, 0x00020000')
    a(f's_mov_b32 s{sStride}, 1024')
    srd_off(a, SO, sWS, sWS + 1, WS_X1T, 448 * 8192)
    a.label('K1_SETUP_DONE')
    a('s_mov_b32 s4, s88')
    a('s_mov_b32 s5, s89')
    a('s_mov_b32 s6, s90')
    a('s_mov_b32 s7, 0x00020000')
    a('s_mov_b32 s8, s87')

    vL = 1
    vAd = 2
    vBd = 6
    vAr = 7
    vBr = 11
    vT = 13
    vP = 32
    ACC = 64
    AF = [128, 144]
    BF = [160, 176]
    t0, t1, t2 = vT, vT + 1, vT + 2
    a(f'v_and_b32 v{vL}, 63, v0')
    a(f'v_lshrrev_b32 v{t0}, 3, v{vL}')
    a(f's_lshl_b32 s{sTmp}, s{sRB}, 8')
    a(f's_lshl_b32 s{sTmp2}, s{sW}, 5')
    a(f's_add_u32 s{sTmp}, s{sTmp}, s{sTmp2}')
    a(f'v_add_u32 v{t0}, s{sTmp}, v{t0}')
    a(f'v_mul_u32_u24 v{t0}, 896, v{t0}')
    a(f'v_lshrrev_b32 v{t1}, 4, v{vL}')
    a(f'v_and_b32 v{t2}, 7, v{vL}')
    a(f'v_xor_b32 v{t2}, v{t2}, v{t1}')
    a(f'v_xor_b32 v{t1}, 4, v{t2}')
    for j in range(4):
        a(f'v_lshl_add_u32 v{vAd+j}, v{t1 if j & 1 else t2}, 4, v{t0}')
        if j:
            a(f'v_add_u32 v{vAd+j}, {j*8*896}, v{vAd+j}')
    a(f'v_lshrrev_b32 v{t0}, 3, v{vL}')
    a(f's_lshl_b32 s{sTmp}, s{sW}, 3')
    a(f'v_add_u32 v{t0}, s{sTmp}, v{t0}')
    a(f'v_mul_lo_u32 v{t0}, v{t0}, s{sStride}')
    a(f'v_bfe_u32 v{t1}, v{vL}, 4, 1')
    a(f's_and_b32 s{sTmp2}, s{sW}, 1')
    a(f's_lshl_b32 s{sTmp2}, s{sTmp2}, 1')
    a(f'v_or_b32 v{t1}, s{sTmp2}, v{t1}')
    a(f'v_bfe_u32 v{t2}, v{vL}, 1, 2')
    a(f'v_xor_b32 v{t2}, v{t2}, v{t1}')
    a(f'v_lshl_add_u32 v{t0}, v{t2}, 5, v{t0}')
    a(f'v_and_b32 v{t2}, 1, v{vL}')
    a(f'v_lshl_add_u32 v{vBd}, v{t2}, 4, v{t0}')
    a(f's_lshl_b32 s{sM0A}, s{sW}, 12')
    a(f's_lshl_b32 s{sM0B}, s{sW}, 10')
    a(f's_add_u32 s{sM0B}, s{sM0B}, 98304')

    def stage_pieces(step):
        slot = step % 3
        def setup():
            a(f's_mov_b32 s{sOffA}, {step*128}')
            a(f's_mul_i32 s{sOffB}, s{sStride}, {step*64}')
        def pa(j):
            def f():
                a(f's_add_u32 m0, s{sM0A}, {slot*32768 + j*1024}')
                a('s_nop 0')
                a(f'buffer_load_dwordx4 v{vAd+j}, s[{SA}:{SA+3}], s{sOffA} offen lds')
            return f
        def pb(half):
            def f():
                a(f's_add_u32 m0, s{sM0B}, {slot*16384 + half*8192}')
                a('s_nop 0')
                sb = SBU if half else SBG
                a(f'buffer_load_dwordx4 v{vBd}, s[{sb}:{sb+3}], s{sOffB} offen lds')
            return f
        return [setup] + [pa(j) for j in range(4)] + [pb(0), pb(1)]
    def issue_stage(step):
        for f in stage_pieces(step):
            f()

    if STAMP2: stamp(a, 4)
    for st in range(2):
        issue_stage(st)
        if st == 0: a('s_barrier')
        if STAMP2: stamp(a, 5+st)
    vWTo = vT + 6
    vGo = vT + 7
    vWTr = vT + 8
    vX = 192
    vGW = 196
    NPL = 2
    def prep_loads():
        a(f's_lshl_b32 s{sKB}, s2, 3')
        a(f's_add_u32 s{sKB}, s{sKB}, s{sW}')
        a(f's_mul_i32 s{sTmp2}, s{sKB}, 896')
        a(f'v_lshlrev_b32 v{t1}, 4, v{vL}')
        a(f'v_mov_b32 v{t2}, 0x7f000000')
        a(f'v_cmp_gt_u32 vcc, 56, v{vL}')
        a('s_nop 1')
        a(f'v_cndmask_b32 v{t2}, v{t2}, v{t1}, vcc')
        a(f'buffer_load_dwordx4 {vr(vX,4)}, v{t2}, s[{SA}:{SA+3}], s{sTmp2} offen')
        a(f'buffer_load_dwordx4 {vr(vGW,4)}, v{t1}, s[{SGWs}:{SGWs+3}], 0 offen')
        a(f's_lshl_b32 s{sTmp}, s{sKB}, 2')
        a(f'v_mov_b32 v{vGo}, s{sTmp}')
    WBASE = 147456
    def wt_dma(tag):
        a(f's_lshr_b32 s{sTmp}, s2, 5')
        a(f's_bfe_u32 s{sTmp2}, s2, 0x30002')
        a(f's_lshl_b32 s{sTmp2}, s{sTmp2}, 3')
        a(f's_add_u32 s{sTmp}, s{sTmp}, s{sTmp2}')
        a(f's_and_b32 s{sTmp2}, s2, 3')
        a(f's_lshl_b32 s{sTmp2}, s{sTmp2}, 7')
        a(f's_add_u32 s{sTmp}, s{sTmp}, s{sTmp2}')
        a(f's_bfe_u32 s{sTmp2}, s{sW}, 0x10001')
        a(f's_lshl_b32 s{sTmp2}, s{sTmp2}, 6')
        a(f's_add_u32 s{sTmp}, s{sTmp}, s{sTmp2}')
        a(f's_and_b32 s{sTmp2}, s{sW}, 1')
        a(f's_lshl_b32 s{sTmp2}, s{sTmp2}, 10')
        a(f's_add_u32 s{sTmp}, s{sTmp}, s{sTmp2}')
        a(f's_mul_i32 s{sTmp}, s{sTmp}, 450')
        a(f's_and_b32 s{sTmp}, s{sTmp}, 0xfffffffc')
        a(f'v_lshrrev_b32 v{t1}, 5, v{vL}')
        a(f'v_mul_u32_u24 v{t1}, {512*450}, v{t1}')
        a(f'v_and_b32 v{t2}, 31, v{vL}')
        a(f'v_lshl_add_u32 v{t1}, v{t2}, 4, v{t1}')
        a(f's_lshl_b32 s{sTmp2}, s{sW}, 10')
        a(f's_add_u32 m0, s{sTmp2}, {WBASE}')
        a(f's_cmp_ge_u32 s{sW}, 4')
        a(f's_cbranch_scc1 K1_WT_IM_{tag}')
        a(f'buffer_load_dwordx4 v{t1}, s[{SWR}:{SWR+3}], s{sTmp} offen lds')
        a(f's_branch K1_WT_DONE_{tag}')
        a.label(f'K1_WT_IM_{tag}')
        a(f'buffer_load_dwordx4 v{t1}, s[{SWI}:{SWI+3}], s{sTmp} offen lds')
        a.label(f'K1_WT_DONE_{tag}')
        a(f's_bfe_u32 s{sTmp}, s2, 0x10005')
        a(f's_lshl_b32 s{sTmp}, s{sTmp}, 1')
        a(f's_add_u32 s{sTmp}, s{sTmp}, {WBASE}')
        a(f'v_and_b32 v{t1}, 255, v0')
        a(f'v_lshl_add_u32 v{vWTr}, v{t1}, 1, s{sTmp}')
        a(f's_mul_i32 s{sTmp}, s2, 7200')
        a(f'v_lshlrev_b32 v{vWTo}, 5, v0')
        a(f'v_add_u32 v{vWTo}, s{sTmp}, v{vWTo}')
        a(f'v_mov_b32 v{t1}, 0x7f000000')
        a(f'v_cmp_gt_u32 vcc, 225, v0')
        a('s_nop 1')
        a(f'v_cndmask_b32 v{vWTo}, v{t1}, v{vWTo}, vcc')
    def wt_store(tag):
        for sl in range(8):
            a(f'ds_read_u16 v{vP+sl}, v{vWTr} offset:{sl*512}')
            a(f'ds_read_u16 v{vP+8+sl}, v{vWTr} offset:{4096 + sl*512}')
        a('s_waitcnt lgkmcnt(0)')
        for sl in range(8):
            a(f'v_lshl_or_b32 v{vP+sl}, v{vP+8+sl}, 16, v{vP+sl}')
        a(f'buffer_store_dwordx4 {vr(vP,4)}, v{vWTo}, s[{SWT}:{SWT+3}], 0 offen')
        a(f'buffer_store_dwordx4 {vr(vP+4,4)}, v{vWTo}, s[{SWT}:{SWT+3}], 0 offen offset:16')
    prep_loads()
    if STAMP2: stamp(a, 8)
    a(f'v_and_b32 v{t0}, 15, v{vL}')
    a(f's_lshr_b32 s{sTmp}, s{sW}, 1')
    a(f's_lshl_b32 s{sTmp}, s{sTmp}, 6')
    a(f'v_add_u32 v{t1}, s{sTmp}, v{t0}')
    a(f'v_lshlrev_b32 v{t1}, 7, v{t1}')
    a(f'v_lshrrev_b32 v{t0}, 1, v{t0}')
    a(f'v_lshrrev_b32 v{t2}, 4, v{vL}')
    a(f'v_xor_b32 v{t0}, v{t0}, v{t2}')
    a(f'v_lshl_add_u32 v{vAr}, v{t0}, 4, v{t1}')
    a(f'v_xor_b32 v{vAr+1}, 64, v{vAr}')
    a(f'v_add_u32 v{vAr+2}, 0x10000, v{vAr}')
    a(f'v_add_u32 v{vAr+3}, 0x10000, v{vAr+1}')
    a(f'v_bfe_u32 v{t0}, v{vL}, 2, 2')
    a(f'v_lshl_add_u32 v{t1}, v{t2}, 3, v{t0}')
    a(f'v_lshlrev_b32 v{t1}, 7, v{t1}')
    a(f'v_add_u32 v{t1}, 98304, v{t1}')
    a(f'v_and_b32 v{vT+5}, 3, v{vL}')
    a(f'v_lshl_add_u32 v{t1}, v{vT+5}, 3, v{t1}')
    a(f'v_lshrrev_b32 v{t0}, 1, v{t0}')
    a(f'v_and_b32 v{t2}, 1, v{t2}')
    a(f'v_lshl_or_b32 v{t0}, v{t2}, 1, v{t0}')
    a(f's_and_b32 s{sTmp}, s{sW}, 1')
    a(f's_lshl_b32 s{sTmp}, s{sTmp}, 1')
    a(f'v_xor_b32 v{t0}, s{sTmp}, v{t0}')
    a(f'v_lshl_add_u32 v{vBr}, v{t0}, 5, v{t1}')
    a(f'v_xor_b32 v{vBr+1}, 32, v{vBr}')
    for i in range(64):
        a(f'v_mov_b32 v{ACC+i}, 0')

    def warm_touch():
        SPF = 36
        a(f'v_mov_b32 v{t1}, 0x7f000000')
        a(f's_cmp_eq_u32 s{sW}, 0')
        a(f's_cbranch_scc0 K1_WARM1_{warm_touch.n}')
        srd(a, SPF, 72, 73, F * D * 2)
        a(f's_mul_i32 s{sTmp}, s2, {49*128}')
        a(f'v_lshlrev_b32 v{t2}, 7, v{vL}')
        a(f'v_cmp_gt_u32 vcc, 49, v{vL}')
        a('s_nop 1')
        a(f'v_cndmask_b32 v{t2}, v{t1}, v{t2}, vcc')
        a(f'buffer_load_dword v{vT+9}, v{t2}, s[{SPF}:{SPF+3}], s{sTmp} offen')
        a(f's_branch K1_WARM_END_{warm_touch.n}')
        a.label(f'K1_WARM1_{warm_touch.n}')
        a(f's_getpc_b64 s[{SPF+4}:{SPF+5}]')
        a(f's_add_u32 s{SPF+4}, s{SPF+4}, tblG@rel32@lo+4')
        a(f's_addc_u32 s{SPF+5}, s{SPF+5}, tblG@rel32@hi+12')
        srd(a, SPF, SPF + 4, SPF + 5, 448 * 896 + 256 + 2560)
        a(f's_mul_i32 s{sTmp}, s2, {13*128}')
        a(f'v_lshlrev_b32 v{t2}, 7, v{vL}')
        a(f'v_cmp_gt_u32 vcc, 13, v{vL}')
        a(f's_cmp_eq_u32 s{sW}, 1')
        a(f's_cselect_b32 s{sTmp}, s{sTmp}, 0x7f000000')
        a(f'v_cndmask_b32 v{t2}, v{t1}, v{t2}, vcc')
        a(f'buffer_load_dword v{vT+9}, v{t2}, s[{SPF}:{SPF+3}], s{sTmp} offen')
        a.label(f'K1_WARM_END_{warm_touch.n}')
        warm_touch.n += 1
    warm_touch.n = 0
    def prep_compute():
        GWU, PR, TP = 200, 208, 216
        for j in range(4):
            a(f'v_lshlrev_b32 v{GWU+2*j}, 16, v{vGW+j}')
            a(f'v_and_b32 v{GWU+1+2*j}, 0xffff0000, v{vGW+j}')
            a(f'v_lshlrev_b32 v{PR+2*j}, 16, v{vX+j}')
            a(f'v_and_b32 v{PR+1+2*j}, 0xffff0000, v{vX+j}')
        for j in range(4):
            a(f'v_pk_mul_f32 {vr(PR+2*j,2)}, {vr(PR+2*j,2)}, {vr(GWU+2*j,2)}')
        for j in range(4):
            round_bf16_pair(a, PR + 2 * j, PR + 2 * j + 1, PR + 2 * j, PR + 2 * j + 1, TP + j)
        a(f'v_pk_add_f32 {vr(PR,2)}, {vr(PR,2)}, {vr(PR+2,2)}')
        a(f'v_pk_add_f32 {vr(PR+4,2)}, {vr(PR+4,2)}, {vr(PR+6,2)}')
        a(f'v_pk_add_f32 {vr(PR,2)}, {vr(PR,2)}, {vr(PR+4,2)}')
        g = PR
        a(f'v_add_f32 v{g}, v{PR}, v{PR+1}')
        for sh in (1, 2, 4, 8):
            a('s_nop 1')
            a(f'v_add_f32_dpp v{g}, v{g}, v{g} row_shr:{sh} row_mask:0xf bank_mask:0xf bound_ctrl:0')
        a('s_nop 1')
        a(f'v_add_f32_dpp v{g}, v{g}, v{g} row_bcast:15 row_mask:0xa bank_mask:0xf')
        a('s_nop 1')
        a(f'v_add_f32_dpp v{g}, v{g}, v{g} row_bcast:31 row_mask:0xc bank_mask:0xf')
        a(f'v_cvt_pk_bf16_f32 v{g}, v{g}, v{g}')
        a(f'v_lshlrev_b32 v{g}, 16, v{g}')
        a(f'v_mul_f32 v{g}, {hex(f32bits(-LOG2E))}, v{g}')
        a(f'v_exp_f32 v{g}, v{g}')
        a('s_nop 0')
        a(f'v_add_f32 v{g}, 1.0, v{g}')
        a(f'v_rcp_f32 v{g}, v{g}')
        a('s_nop 0')
        a(f'v_cvt_pk_bf16_f32 v{g}, v{g}, v{g}')
        a(f'v_lshlrev_b32 v{g}, 16, v{g}')
        a('s_mov_b32 exec_lo, 0')
        a('s_mov_b32 exec_hi, 0x80000000')
        a(f'buffer_store_dword v{g}, v{vGo}, s[{SGATE}:{SGATE+3}], 0 offen')
        a('s_mov_b64 exec, -1')
        a('s_nop 4')

    def waits(step, dft):
        return [8, 6, 7, 7, 6, 3][step]

    def endstamp():
        if not STAMP: return
        a('s_waitcnt vmcnt(0)')
        stamp(a, 11)
        a('s_waitcnt lgkmcnt(0)')
        a('s_mov_b32 s75, s100')
        a('s_memrealtime s[100:101]')
        a('s_waitcnt lgkmcnt(0)')
        a('s_sub_u32 s74, s100, s75')
        a('s_add_u32 s100, s74, s76')
        stamp_flush(a, 13, sWS, sW, 2, SWR, extra=75)

    def mainloop(swapped):
        def rdA(step, h, mts=range(4)):
            slot = step % 3
            for mt in mts:
                if slot < 2:
                    a(f'ds_read_b128 {vr(AF[h]+mt*4,4)}, v{vAr+h} offset:{slot*32768 + mt*2048}')
                else:
                    a(f'ds_read_b128 {vr(AF[h]+mt*4,4)}, v{vAr+2+h} offset:{mt*2048}')
        def rdB(step, h, nts):
            slot = step % 3
            for nt in nts:
                half, t = nt >> 1, nt & 1
                for u in range(2):
                    a(f'ds_read_b64_tr_b16 {vr(BF[h]+nt*4+u*2,2)}, v{vBr+t} offset:{slot*16384 + half*8192 + h*4096 + u*512}')
        def mf(h, nt, mt):
            acc = vr(ACC + nt * 16 + mt * 4, 4)
            A_, B_ = vr(AF[h] + mt * 4, 4), vr(BF[h] + nt * 4, 4)
            if swapped:
                a(f'v_mfma_f32_16x16x32_bf16 {acc}, {B_}, {A_}, {acc}')
            else:
                a(f'v_mfma_f32_16x16x32_bf16 {acc}, {A_}, {B_}, {acc}')
        stamp(a, 1)
        a(f's_waitcnt vmcnt(8)')
        a('s_barrier')
        stamp(a, 2)
        issue_stage(2)
        rdA(0, 0); rdB(0, 0, range(4))
        for step in range(7):
            rdA(step, 1)
            a('s_waitcnt lgkmcnt(4)')
            for nt in range(4):
                rdB(step, 1, [nt])
                for mt in range(4):
                    mf(0, nt, mt)
            if step < 6:
                a(f's_waitcnt vmcnt({waits(step, not swapped)}) lgkmcnt(0)')
                a('s_barrier')
                if not STAMP2: stamp(a, 3 + step)
                if step == 4:
                    wt_store(int(swapped))
                    a(f'buffer_load_dword v31, v30, s[4:7], s8 offen')
                if step in (2, 3):
                    lbl = f'K1_GATE_SKIP_{step}_{int(swapped)}'
                    a(f's_cmp_{"ge" if step == 2 else "lt"}_u32 s{sW}, 4')
                    a(f's_cbranch_scc1 {lbl}')
                    prep_compute()
                    a.label(lbl)
                pieces = stage_pieces(step + 3) if step + 3 <= 6 else []
                if pieces:
                    pieces.pop(0)()
                cnt = 0
                for nt in range(4):
                    rdA(step + 1, 0, [nt])
                    rdB(step + 1, 0, [nt])
                    for mt in range(4):
                        mf(1, nt, mt)
                        cnt += 1
                        if pieces and cnt in (1, 4, 6, 9, 11, 14):
                            pieces.pop(0)()
                assert not pieces
                if step == 1:
                    wt_dma(int(swapped))
            else:
                a('s_waitcnt lgkmcnt(0)')
                for nt in range(4):
                    for mt in range(4):
                        mf(1, nt, mt)
        a('s_nop 7')
        a('s_nop 7')
        stamp(a, 10)

    a(f's_cmp_eq_u32 s{sIsD}, 1')
    a('s_cbranch_scc1 K1_DFT')
    mainloop(True)
    vO = vT
    a(f'v_and_b32 v{t1}, 15, v{vL}')
    a(f's_lshl_b32 s{sTmp}, s{sRB}, 8')
    a(f's_lshr_b32 s{sTmp2}, s{sW}, 1')
    a(f's_lshl_b32 s{sTmp2}, s{sTmp2}, 6')
    a(f's_add_u32 s{sTmp}, s{sTmp}, s{sTmp2}')
    a(f'v_add_u32 v{t1}, s{sTmp}, v{t1}')
    a(f'v_mul_u32_u24 v{t1}, 3584, v{t1}')
    a(f'v_bfe_u32 v{t2}, v{vL}, 4, 1')
    a(f'v_lshl_add_u32 v{t1}, v{t2}, 5, v{t1}')
    a(f'v_bfe_u32 v{t2}, v{vL}, 5, 1')
    a(f'v_lshl_add_u32 v{t1}, v{t2}, 4, v{t1}')
    a(f's_lshl_b32 s{sTmp}, s{sCB}, 7')
    a(f's_and_b32 s{sTmp2}, s{sW}, 1')
    a(f's_lshl_b32 s{sTmp2}, s{sTmp2}, 6')
    a(f's_add_u32 s{sTmp}, s{sTmp}, s{sTmp2}')
    a(f'v_add_u32 v{vO}, s{sTmp}, v{t1}')
    for mt in range(4):
        a(f's_mov_b32 s{sMt+mt}, {mt*16*3584}')
    a(f's_mov_b32 s{sC}, {hex(f32bits(GC1))}')
    a(f's_mov_b32 s{sC+1}, {hex(f32bits(GC1))}')
    vC0 = vT + 3
    assert vC0 % 2 == 0
    a(f'v_mov_b32 v{vC0}, {hex(f32bits(GC0))}')
    a(f'v_mov_b32 v{vC0+1}, {hex(f32bits(GC0))}')
    for mt in range(4):
        P = 128 + mt * 4
        for t in range(2):
            G_ = ACC + t * 16 + mt * 4
            U_ = ACC + (2 + t) * 16 + mt * 4
            T = 144 + (t * 16)
            for p in range(2):
                round_bf16_pair(a, G_ + 2 * p, G_ + 2 * p + 1, G_ + 2 * p, G_ + 2 * p + 1, T + 8 + p)
                round_bf16_pair(a, U_ + 2 * p, U_ + 2 * p + 1, U_ + 2 * p, U_ + 2 * p + 1, T + 10 + p)
            for p in range(2):
                a(f'v_pk_mul_f32 {vr(T+2*p,2)}, {vr(G_+2*p,2)}, {vr(G_+2*p,2)}')
            for p in range(2):
                a(f'v_pk_fma_f32 {vr(T+2*p,2)}, {vr(T+2*p,2)}, s[{sC}:{sC+1}], {vr(vC0,2)}')
            for p in range(2):
                a(f'v_pk_mul_f32 {vr(T+2*p,2)}, {vr(T+2*p,2)}, {vr(G_+2*p,2)}')
            for r in range(4):
                a(f'v_exp_f32 v{T+r}, v{T+r}')
            for p in range(2):
                a(f'v_pk_add_f32 {vr(T+2*p,2)}, {vr(T+2*p,2)}, 1.0 op_sel_hi:[1,0]')
            for r in range(4):
                a(f'v_rcp_f32 v{T+r}, v{T+r}')
            for p in range(2):
                a(f'v_pk_mul_f32 {vr(T+2*p,2)}, {vr(T+2*p,2)}, {vr(G_+2*p,2)}')
            for p in range(2):
                round_bf16_pair(a, T + 4 + 2 * p, T + 5 + 2 * p, T + 2 * p, T + 2 * p + 1, T + 8 + p)
            for p in range(2):
                a(f'v_pk_mul_f32 {vr(T+4+2*p,2)}, {vr(T+4+2*p,2)}, {vr(U_+2*p,2)}')
            for p in range(2):
                a(f'v_cvt_pk_bf16_f32 v{P+2*t+p}, v{T+4+2*p}, v{T+5+2*p}')
        a('s_nop 1')
        a(f'v_permlane16_swap_b32 v{P}, v{P+2}')
        a(f'v_permlane16_swap_b32 v{P+1}, v{P+3}')
        a('s_nop 1')
        a(f'buffer_store_dwordx4 {vr(P,4)}, v{vO}, s[{SO}:{SO+3}], s{sMt+mt} offen')
    endstamp()
    a('s_endpgm')
    a.label('K1_DFT')
    mainloop(False)
    a('s_barrier')
    a(f's_mul_i32 s{sTmp}, s{sW}, 17408')
    a(f'v_and_b32 v{t1}, 15, v{vL}')
    a(f'v_mul_u32_u24 v{t1}, 272, v{t1}')
    a(f'v_lshrrev_b32 v{t2}, 4, v{vL}')
    a(f'v_lshl_add_u32 v{t1}, v{t2}, 4, v{t1}')
    a(f'v_add_u32 v{t1}, s{sTmp}, v{t1}')
    for nt in range(4):
        for mt in range(4):
            a(f'ds_write_b128 v{t1}, {vr(ACC+nt*16+mt*4,4)} offset:{nt*16*272 + mt*64}')
    a(f'v_mul_u32_u24 v{t0}, 272, v{t2}')
    a(f'v_and_b32 v{t1}, 15, v{vL}')
    a(f'v_lshl_add_u32 v{t0}, v{t1}, 4, v{t0}')
    a(f'v_add_u32 v{t0}, s{sTmp}, v{t0}')
    a('s_waitcnt lgkmcnt(0)')
    for j in range(16):
        a(f'ds_read_b128 {vr(ACC+j*4,4)}, v{t0} offset:{j*4*272}')
    a(f's_lshl_b32 s{sTmp}, s{sCB}, 7')
    a(f's_and_b32 s{sTmp2}, s{sW}, 1')
    a(f's_lshl_b32 s{sTmp2}, s{sTmp2}, 5')
    a(f's_add_u32 s{sTmp}, s{sTmp}, s{sTmp2}')
    a(f'v_add_u32 v{t2}, s{sTmp}, v{t2}')
    a(f'v_lshlrev_b32 v{t2}, 13, v{t2}')
    a(f'v_lshl_add_u32 v{t2}, v{t1}, 4, v{t2}')
    a(f's_lshl_b32 s{sTmp}, s{sRB}, 10')
    a(f's_lshr_b32 s{sTmp2}, s{sW}, 1')
    a(f's_lshl_b32 s{sTmp2}, s{sTmp2}, 8')
    a(f's_add_u32 s{sTmp}, s{sTmp}, s{sTmp2}')
    a(f'v_add_u32 v{t2}, s{sTmp}, v{t2}')
    for j in range(16):
        nt = j >> 2
        coff = ((nt >> 1) * 64 + (nt & 1) * 16 + (j & 3) * 4) * 8192
        a(f's_mov_b32 s{sTmp}, {coff}')
        a(f's_waitcnt lgkmcnt({15-j})')
        a(f'buffer_store_dwordx4 {vr(ACC+j*4,4)}, v{t2}, s[{SO}:{SO+3}], s{sTmp} offen')
    endstamp()
    a.label('K1_END')
    a('s_endpgm')
    kernel_desc(a, name, 224)

def cp(r):
    return f'v[{r}:{r+1}]'
def PK_PLAIN(): return 'scalar_all' not in EXP
def PK_SWZ(): return False
def cadd(a, d, x, y):
    if PK_PLAIN():
        a(f'v_pk_add_f32 {cp(d)}, {cp(x)}, {cp(y)}')
    else:
        a(f'v_add_f32 v{d}, v{x}, v{y}'); a(f'v_add_f32 v{d+1}, v{x+1}, v{y+1}')
def csub(a, d, x, y):
    if PK_PLAIN():
        a(f'v_pk_add_f32 {cp(d)}, {cp(x)}, {cp(y)} neg_lo:[0,1] neg_hi:[0,1]')
    else:
        a(f'v_sub_f32 v{d}, v{x}, v{y}'); a(f'v_sub_f32 v{d+1}, v{x+1}, v{y+1}')
def caddrot(a, d, x, y, minus_i):
    if not PK_SWZ():
        if minus_i:
            a(f'v_add_f32 v{d}, v{x}, v{y+1}'); a(f'v_sub_f32 v{d+1}, v{x+1}, v{y}')
        else:
            a(f'v_sub_f32 v{d}, v{x}, v{y+1}'); a(f'v_add_f32 v{d+1}, v{x+1}, v{y}')
        return
    if minus_i:
        a(f'v_pk_add_f32 {cp(d)}, {cp(x)}, {cp(y)} op_sel:[0,1] op_sel_hi:[1,0] neg_hi:[0,1]')
    else:
        a(f'v_pk_add_f32 {cp(d)}, {cp(x)}, {cp(y)} op_sel:[0,1] op_sel_hi:[1,0] neg_lo:[0,1]')
def cfmas(a, d, x, y, sS, neg):
    if not PK_PLAIN():
        n = '-' if neg else ''
        a(f'v_fma_f32 v{d}, {n}v{y}, s{sS}, v{x}'); a(f'v_fma_f32 v{d+1}, {n}v{y+1}, s{sS}, v{x+1}')
        return
    n = ' neg_lo:[1,0,0] neg_hi:[1,0,0]' if neg else ''
    a(f'v_pk_fma_f32 {cp(d)}, {cp(y)}, s[{sS}:{sS+1}], {cp(x)}{n}')
def cfmasrot(a, d, x, y, sS, minus_i):
    if not PK_SWZ():
        if minus_i:
            a(f'v_fma_f32 v{d}, v{y+1}, s{sS}, v{x}'); a(f'v_fma_f32 v{d+1}, -v{y}, s{sS}, v{x+1}')
        else:
            a(f'v_fma_f32 v{d}, -v{y+1}, s{sS}, v{x}'); a(f'v_fma_f32 v{d+1}, v{y}, s{sS}, v{x+1}')
        return
    if minus_i:
        a(f'v_pk_fma_f32 {cp(d)}, {cp(y)}, s[{sS}:{sS+1}], {cp(x)} op_sel:[1,0,0] op_sel_hi:[0,1,1] neg_hi:[1,0,0]')
    else:
        a(f'v_pk_fma_f32 {cp(d)}, {cp(y)}, s[{sS}:{sS+1}], {cp(x)} op_sel:[1,0,0] op_sel_hi:[0,1,1] neg_lo:[1,0,0]')
def cmul1(a, t, z, w):
    if not PK_SWZ():
        a(f'v_mul_f32 v{t}, v{z}, v{w}'); a(f'v_mul_f32 v{t+1}, v{z+1}, v{w}')
        return
    a(f'v_pk_mul_f32 {cp(t)}, {cp(z)}, {cp(w)} op_sel:[0,0] op_sel_hi:[1,0]')
def cmul2(a, d, z, w, t, conj):
    if not PK_SWZ():
        if conj:
            a(f'v_fma_f32 v{d}, v{z+1}, v{w+1}, v{t}'); a(f'v_fma_f32 v{d+1}, -v{z}, v{w+1}, v{t+1}')
        else:
            a(f'v_fma_f32 v{d}, -v{z+1}, v{w+1}, v{t}'); a(f'v_fma_f32 v{d+1}, v{z}, v{w+1}, v{t+1}')
        return
    if conj:
        a(f'v_pk_fma_f32 {cp(d)}, {cp(z)}, {cp(w)}, {cp(t)} op_sel:[1,1,0] op_sel_hi:[0,1,1] neg_hi:[1,0,0]')
    else:
        a(f'v_pk_fma_f32 {cp(d)}, {cp(z)}, {cp(w)}, {cp(t)} op_sel:[1,1,0] op_sel_hi:[0,1,1] neg_lo:[1,0,0]')
def cmul(a, d, z, w, t, conj=False):
    cmul1(a, t, z, w); cmul2(a, d, z, w, t, conj)

def dft8(a, Z, Y, T, sS, fwd):
    z = lambda i: Z + 2 * i
    y = lambda i: Y + 2 * i
    mi = fwd
    for i in range(4):
        cadd(a, y(i), z(i), z(i + 4))
    for i in range(4):
        csub(a, y(i + 4), z(i), z(i + 4))
    cadd(a, z(0), y(0), y(2)); cadd(a, z(1), y(1), y(3))
    csub(a, z(2), y(0), y(2)); csub(a, z(3), y(1), y(3))
    caddrot(a, z(4), y(5), y(5), mi); caddrot(a, z(5), y(7), y(7), mi)
    caddrot(a, z(6), y(4), y(6), mi); caddrot(a, z(7), y(4), y(6), not mi)
    caddrot(a, T, z(4), z(5), mi); caddrot(a, T + 2, z(4), z(5), not mi)
    cadd(a, y(0), z(0), z(1)); csub(a, y(4), z(0), z(1))
    caddrot(a, y(2), z(2), z(3), mi); caddrot(a, y(6), z(2), z(3), not mi)
    cfmas(a, y(1), z(6), T, sS, False); cfmas(a, y(5), z(6), T, sS, True)
    cfmasrot(a, y(3), z(7), T + 2, sS, mi); cfmasrot(a, y(7), z(7), T + 2, sS, not mi)

def dft4(a, Z, Y, fwd):
    z = lambda i: Z + 2 * i
    y = lambda i: Y + 2 * i
    cadd(a, y(0), z(0), z(2)); cadd(a, y(1), z(1), z(3))
    csub(a, y(2), z(0), z(2)); csub(a, y(3), z(1), z(3))
    cadd(a, z(0), y(0), y(1)); csub(a, z(2), y(0), y(1))
    caddrot(a, z(1), y(2), y(3), fwd); caddrot(a, z(3), y(2), y(3), not fwd)

def tw_powers(a, W, T):
    w = lambda i: W + 2 * (i - 1)
    cmul(a, w(2), w(1), w(1), T)
    cmul(a, w(3), w(2), w(1), T)
    cmul(a, w(4), w(2), w(2), T)
    cmul(a, w(5), w(4), w(1), T)
    cmul(a, w(6), w(3), w(3), T)
    cmul(a, w(7), w(4), w(3), T)

N_F2 = 224
def gen_k2(a):
    name = 'k2_kernel'
    kernel_header(a, name)
    sWS, sWd = 4, 6
    sW, sTmp, sTmp2, sK = 8, 9, 10, 11
    a(f's_cmp_ge_u32 s2, {N_F2 + 225}')
    a('s_cbranch_scc1 K2_END')
    stamp_begin(a)
    a('s_load_dwordx2 s[4:5], s[0:1], 80')
    a('s_load_dwordx2 s[6:7], s[0:1], 48')
    a('v_lshrrev_b32 v1, 6, v0')
    a('s_nop 0')
    a(f'v_readfirstlane_b32 s{sW}, v1')
    a(f's_cmp_lt_u32 s2, {N_F2}')
    a('s_cbranch_scc1 K2_F2')
    SX, SWT2, SY, STW = 12, 16, 20, 24
    sRe, sIm, sYre, sYim = 28, 29, 30, 31
    sS = 32
    a(f's_sub_u32 s{sK}, s2, {N_F2}')
    a('s_getpc_b64 s[34:35]')
    a('s_add_u32 s34, s34, tblTW@rel32@lo+4')
    a('s_addc_u32 s35, s35, tblTW@rel32@hi+12')
    a('s_waitcnt lgkmcnt(0)')
    srd_off(a, SX, sWS, sWS + 1, WS_X1T, 448 * 8192)
    srd_off(a, SWT2, sWS, sWS + 1, WS_WT, 256 * 7200)
    srd_off(a, SY, sWS, sWS + 1, WS_Y1T, 448 * 4096)
    srd(a, STW, 34, 35, (256 + 32 + 4) * 8)
    a(f's_mov_b32 s{sS}, {hex(f32bits(math.sqrt(0.5)))}')
    a(f's_mov_b32 s{sS+1}, {hex(f32bits(math.sqrt(0.5)))}')
    a(f's_lshl_b32 s{sRe}, s{sK}, 13')
    a(f's_add_u32 s{sIm}, s{sRe}, {224*8192}')
    a(f's_lshl_b32 s{sYre}, s{sK}, 12')
    a(f's_add_u32 s{sYim}, s{sYre}, {224*4096}')
    a(f's_cmp_eq_u32 s{sK}, 0')
    a(f's_cselect_b32 s{sIm}, 0x7f000000, s{sIm}')
    a(f's_cselect_b32 s{sYim}, 0x7f000000, s{sYim}')
    a(f's_cmp_eq_u32 s{sK}, 224')
    a(f's_cselect_b32 s{sIm}, 0x7f000000, s{sIm}')
    a(f's_cselect_b32 s{sYim}, 0x7f000000, s{sYim}')
    Z, Y, T = 16, 32, 48
    TW1, TW2, TW3 = 64, 78, 92
    WP = 112
    vO4, vO2, v8 = 2, 3, 4
    vE1w, vE1r, vE2w, vE2r, vE3w, vE3r = 5, 6, 7, 8, 9, 10
    t0, t1 = 11, 12
    a(f'v_lshlrev_b32 v{vO4}, 2, v0')
    a(f'v_add_u32 v13, 4096, v{vO4}')
    for m in range(8):
        vo = vO4 if m < 4 else 13
        a(f'buffer_load_dword v{Z+2*m}, v{vo}, s[{SX}:{SX+3}], s{sRe} offen offset:{(m&3)*1024}')
        a(f'buffer_load_dword v{Z+2*m+1}, v{vo}, s[{SX}:{SX+3}], s{sIm} offen offset:{(m&3)*1024}')
    a(f'v_lshlrev_b32 v{v8}, 3, v0')
    a(f'buffer_load_dwordx2 {cp(TW1)}, v{v8}, s[{STW}:{STW+3}], 0 offen')
    a(f'v_and_b32 v{t0}, 31, v0')
    a(f'v_lshlrev_b32 v{t0}, 3, v{t0}')
    a(f'buffer_load_dwordx2 {cp(TW2)}, v{t0}, s[{STW}:{STW+3}], 0 offen offset:2048')
    a(f'v_and_b32 v{t1}, 3, v0')
    a(f'v_lshlrev_b32 v{t1}, 3, v{t1}')
    a(f'buffer_load_dwordx2 {cp(TW3)}, v{t1}, s[{STW}:{STW+3}], 0 offen offset:{2048+256}')
    a(f'v_mul_u32_u24 v{t0}, 7200, v0')
    a(f's_lshl_b32 s{sTmp}, s{sK}, 5')
    a(f'buffer_load_dwordx4 {vr(WP,4)}, v{t0}, s[{SWT2}:{SWT2+3}], s{sTmp} offen')
    a(f'buffer_load_dwordx4 {vr(WP+4,4)}, v{t0}, s[{SWT2}:{SWT2+3}], s{sTmp} offen offset:16')
    E1, E1B, E23 = 0, 16384, 32768
    QS = 8 * 288
    a(f'v_mov_b32 v{vE1w}, v{v8}')
    a(f'v_lshrrev_b32 v{t0}, 5, v0')
    a(f'v_and_b32 v{t1}, 31, v0')
    a(f'v_lshlrev_b32 v{vE1r}, 11, v{t0}')
    a(f'v_lshl_add_u32 v{vE1r}, v{t1}, 3, v{vE1r}')
    a(f'v_mul_u32_u24 v{t0}, {QS}, v{t0}')
    a(f'v_add_u32 v{t0}, {E23}, v{t0}')
    a(f'v_lshl_add_u32 v{vE2w}, v{t1}, 3, v{t0}')
    a(f'v_bfe_u32 v{t1}, v0, 2, 3')
    a(f'v_mul_u32_u24 v{vE2r}, 288, v{t1}')
    a(f'v_add_u32 v{vE2r}, v{vE2r}, v{t0}')
    a(f'v_mul_u32_u24 v{vE3w}, 272, v{t1}')
    a(f'v_add_u32 v{vE3w}, v{vE3w}, v{t0}')
    a(f'v_and_b32 v{t1}, 3, v0')
    a(f'v_lshl_add_u32 v{vE2r}, v{t1}, 3, v{vE2r}')
    a(f'v_lshl_add_u32 v{vE3r}, v{t1}, 6, v{vE3w}')
    a(f'v_lshl_add_u32 v{vE3w}, v{t1}, 3, v{vE3w}')
    a(f'v_lshlrev_b32 v{vO2}, 1, v0')
    stamp(a, 1)
    a('s_waitcnt vmcnt(2)')
    stamp(a, 2)
    tw_powers(a, TW1, T); tw_powers(a, TW2, T); tw_powers(a, TW3, T)

    def twiddle(Rs, Rd, TWb, conj):
        a(f'v_mov_b32 v{Rd}, v{Rs}')
        a(f'v_mov_b32 v{Rd+1}, v{Rs+1}')
        for q in range(1, 8):
            cmul1(a, Rd + 2 * q, Rs + 2 * q, TWb + 2 * (q - 1))
        for q in range(1, 8):
            cmul2(a, Rd + 2 * q, Rs + 2 * q, TWb + 2 * (q - 1), Rd + 2 * q, conj)
    def wr64(addr, R, stride, base=0):
        for i in range(8):
            a(f'ds_write_b64 v{addr}, {cp(R+2*i)} offset:{base + i*stride}')
    def rd64(addr, R, stride, base=0):
        for i in range(8):
            a(f'ds_read_b64 {cp(R+2*i)}, v{addr} offset:{base + i*stride}')
    U = 120
    dft8(a, Z, Y, T, sS, True); twiddle(Y, Z, TW1, False)
    wr64(vE1w, Z, 2048, E1)
    a('s_waitcnt lgkmcnt(0)')
    a('s_barrier')
    rd64(vE1r, Z, 256, E1)
    a('s_waitcnt lgkmcnt(0)')
    stamp(a, 3)
    dft8(a, Z, Y, T, sS, True); twiddle(Y, Z, TW2, False)
    wr64(vE2w, Z, 288)
    a('s_waitcnt lgkmcnt(0)')
    rd64(vE2r, Z, 32)
    a('s_waitcnt lgkmcnt(0)')
    dft8(a, Z, Y, T, sS, True); twiddle(Y, Z, TW3, False)
    wr64(vE3w, Z, 32)
    a('s_waitcnt lgkmcnt(0)')
    for i in range(4):
        a(f'ds_read_b128 {vr(Z+4*i,4)}, v{vE3r} offset:{16*i}')
    stamp(a, 4)
    a('s_waitcnt lgkmcnt(0) vmcnt(0)')
    stamp(a, 5)
    dft4(a, Z, Y, True); dft4(a, Z + 8, Y + 8, True)
    for i in range(8):
        a(f'v_lshlrev_b32 v{U+2*i}, 16, v{WP+i}')
        a(f'v_and_b32 v{U+2*i+1}, 0xffff0000, v{WP+i}')
    for i in range(8):
        cmul1(a, Y + 2 * i, Z + 2 * i, U + 2 * i)
    for i in range(8):
        cmul2(a, Y + 2 * i, Z + 2 * i, U + 2 * i, Y + 2 * i, False)
    dft4(a, Y, Z, False); dft4(a, Y + 8, Z + 8, False)
    for i in range(4):
        a(f'ds_write_b128 v{vE3r}, {vr(Y+4*i,4)} offset:{16*i}')
    a('s_waitcnt lgkmcnt(0)')
    rd64(vE3w, Y, 32)
    a('s_waitcnt lgkmcnt(0)')
    twiddle(Y, Z, TW3, True); dft8(a, Z, Y, T, sS, False)
    wr64(vE2r, Y, 32)
    a('s_waitcnt lgkmcnt(0)')
    rd64(vE2w, Y, 288)
    a('s_waitcnt lgkmcnt(0)')
    twiddle(Y, Z, TW2, True); dft8(a, Z, Y, T, sS, False)
    wr64(vE1r, Y, 256, E1B)
    a('s_waitcnt lgkmcnt(0)')
    a('s_barrier')
    rd64(vE1w, Y, 2048, E1B)
    a('s_waitcnt lgkmcnt(0)')
    stamp(a, 6)
    twiddle(Y, Z, TW1, True); dft8(a, Z, Y, T, sS, False)
    for m in range(8):
        a(f'v_cvt_pk_bf16_f32 v{Z+m}, v{Y+2*m}, v{Y+2*m+1}')
    for m in range(8):
        a(f'buffer_store_short v{Z+m}, v{vO2}, s[{SY}:{SY+3}], s{sYre} offen offset:{m*512}')
        a(f'buffer_store_short_d16_hi v{Z+m}, v{vO2}, s[{SY}:{SY+3}], s{sYim} offen offset:{m*512}')
    stamp(a, 7)
    stamp_end(a, sWS, sW, 2, 12, 0x2100000)
    a('s_endpgm')

    a.label('K2_F2')
    SH, SB, SO = 12, 16, 20
    sRB, sCB, sOffP, sOffQ, sM0 = 24, 25, 26, 27, 28
    a(f's_and_b32 s{sRB}, s2, 7')
    a(f's_lshl_b32 s{sRB}, s{sRB}, 2')
    a(f's_lshr_b32 s{sTmp}, s2, 3')
    a(f's_and_b32 s{sTmp2}, s{sTmp}, 3')
    a(f's_add_u32 s{sRB}, s{sRB}, s{sTmp2}')
    a(f's_lshr_b32 s{sCB}, s{sTmp}, 2')
    a('s_waitcnt lgkmcnt(0)')
    srd_off(a, SH, sWS, sWS + 1, WS_H, S * F * 2)
    srd(a, SB, sWd, sWd + 1, F * D * 2)
    srd_off(a, SO, sWS, sWS + 1, WS_B, S * D * 2)
    vL = 1
    vPd, vQd = 2, 4
    vPr, vQr = 6, 8
    t0, t1, t2, t3 = 12, 13, 14, 15
    ACC = 128
    PF = [160, 192]
    QF = [176, 208]
    a(f'v_and_b32 v{vL}, 63, v0')
    a(f'v_lshrrev_b32 v{t0}, 3, v{vL}')
    a(f's_lshl_b32 s{sTmp}, s{sW}, 4')
    a(f'v_add_u32 v{t0}, s{sTmp}, v{t0}')
    a(f's_lshl_b32 s{sTmp}, s{sRB}, 6')
    a(f'v_add_u32 v{t3}, s{sTmp}, v{t0}')
    a(f'v_mul_u32_u24 v{t3}, 3584, v{t3}')
    a(f'v_lshrrev_b32 v{t1}, 4, v{vL}')
    a(f'v_and_b32 v{t2}, 7, v{vL}')
    a(f'v_xor_b32 v{t2}, v{t2}, v{t1}')
    a(f'v_lshl_add_u32 v{vPd}, v{t2}, 4, v{t3}')
    a(f'v_xor_b32 v{t2}, 4, v{t2}')
    a(f'v_lshl_add_u32 v{vPd+1}, v{t2}, 4, v{t3}')
    a(f'v_add_u32 v{vPd+1}, {8*3584}, v{vPd+1}')
    a(f'v_bfe_u32 v{t1}, v{vL}, 4, 1')
    a(f'v_bfe_u32 v{t2}, v{vL}, 1, 2')
    a(f'v_xor_b32 v{t2}, v{t2}, v{t1}')
    a(f'v_and_b32 v{t1}, 1, v{vL}')
    a(f'v_lshlrev_b32 v{t1}, 4, v{t1}')
    a(f'v_lshl_add_u32 v{t1}, v{t2}, 5, v{t1}')
    a(f'v_xor_b32 v{t2}, 64, v{t1}')
    a(f'v_mul_u32_u24 v{t3}, 896, v{t0}')
    a(f's_lshl_b32 s{sTmp}, s{sCB}, 7')
    a(f'v_add_u32 v{t3}, s{sTmp}, v{t3}')
    a(f'v_add_u32 v{vQd}, v{t3}, v{t1}')
    a(f'v_add_u32 v{vQd+1}, v{t3}, v{t2}')
    a(f'v_add_u32 v{vQd+1}, {8*896}, v{vQd+1}')
    a(f's_lshl_b32 s{sM0}, s{sW}, 11')
    NST = 28
    def pieces(st):
        slot = st % 4
        def mk(part, jj):
            def f():
                if part == 0:
                    a(f's_mov_b32 s{sOffP}, {st*128}')
                    a(f's_add_u32 m0, s{sM0}, {slot*16384 + jj*1024}')
                    a('s_nop 0')
                    a(f'buffer_load_dwordx4 v{vPd+jj}, s[{SH}:{SH+3}], s{sOffP} offen lds')
                else:
                    a(f's_mov_b32 s{sOffQ}, {st*64*896}')
                    a(f's_add_u32 m0, s{sM0}, {slot*16384 + 8192 + jj*1024}')
                    a('s_nop 0')
                    a(f'buffer_load_dwordx4 v{vQd+jj}, s[{SB}:{SB+3}], s{sOffQ} offen lds')
            return f
        if 'nodma' in EXP: return []
        return [mk(0, 0), mk(1, 0), mk(0, 1), mk(1, 1)]
    for st in range(4):
        for f in pieces(st):
            f()
    a(f'v_and_b32 v{t0}, 15, v{vL}')
    a(f's_lshr_b32 s{sTmp}, s{sW}, 1')
    a(f's_lshl_b32 s{sTmp}, s{sTmp}, 5')
    a(f'v_add_u32 v{t1}, s{sTmp}, v{t0}')
    a(f'v_lshlrev_b32 v{t1}, 7, v{t1}')
    a(f'v_lshrrev_b32 v{t0}, 1, v{t0}')
    a(f'v_lshrrev_b32 v{t2}, 4, v{vL}')
    a(f'v_xor_b32 v{t0}, v{t0}, v{t2}')
    a(f'v_lshl_add_u32 v{vPr}, v{t0}, 4, v{t1}')
    a(f'v_xor_b32 v{vPr+1}, 64, v{vPr}')
    a(f'v_bfe_u32 v{t0}, v{vL}, 2, 2')
    a(f'v_lshl_add_u32 v{t1}, v{t2}, 3, v{t0}')
    a(f'v_lshlrev_b32 v{t1}, 7, v{t1}')
    a(f'v_and_b32 v{t3}, 3, v{vL}')
    a(f'v_lshl_add_u32 v{t1}, v{t3}, 3, v{t1}')
    a(f'v_lshrrev_b32 v{t0}, 1, v{t0}')
    a(f'v_and_b32 v{t2}, 1, v{t2}')
    a(f'v_lshl_or_b32 v{t0}, v{t2}, 1, v{t0}')
    a(f's_and_b32 s{sTmp}, s{sW}, 1')
    a(f's_lshl_b32 s{sTmp}, s{sTmp}, 1')
    a(f'v_xor_b32 v{t2}, s{sTmp}, v{t0}')
    a(f'v_lshl_add_u32 v{vQr}, v{t2}, 5, v{t1}')
    a(f'v_add_u32 v{vQr}, 8192, v{vQr}')
    a(f'v_xor_b32 v{vQr+1}, 32, v{vQr}')
    for i in range(16):
        a(f'v_mov_b32 v{ACC+i}, 0')
    def reads(st):
        off = (st % 4) * 16384
        R = []
        for h in range(2):
            for mt in range(2):
                R.append(lambda h=h, mt=mt: a(f'ds_read_b128 {vr(PF[st&1]+h*8+mt*4,4)}, v{vPr+h} offset:{off + mt*2048}'))
            for nt in range(2):
                for u in range(2):
                    R.append(lambda h=h, nt=nt, u=u: a(f'ds_read_b64_tr_b16 {vr(QF[st&1]+h*8+nt*4+u*2,2)}, v{vQr+nt} offset:{off + h*4096 + u*512}'))
        if 'nolds' in EXP: return []
        return R
    stamp(a, 1)
    a('s_waitcnt vmcnt(12)')
    a('s_barrier')
    for f in reads(0):
        f()
    for st in range(NST):
        rem = min(NST - 1, st + 3) - (st + 1)
        if st + 1 < NST:
            a(f's_waitcnt vmcnt({4*rem}) lgkmcnt(0)')
            a('s_barrier')
        else:
            a('s_waitcnt lgkmcnt(0)')
        if st % 4 == 0: stamp(a, 2 + st // 4)
        dm = pieces(st + 4) if st + 4 < NST else []
        rd = reads(st + 1) if st + 1 < NST else []
        for h in range(2):
            for mt in range(2):
                for nt in range(2):
                    for _ in range(2):
                        if rd: rd.pop(0)()
                    acc = vr(ACC + mt * 8 + nt * 4, 4)
                    if 'nomfma' not in EXP: a(f'v_mfma_f32_16x16x32_bf16 {acc}, {vr(QF[st&1]+h*8+nt*4,4)}, {vr(PF[st&1]+h*8+mt*4,4)}, {acc}')
                    if dm and nt == 1:
                        dm.pop(0)()
        while rd: rd.pop(0)()
    a('s_nop 7')
    a('s_nop 7')
    stamp(a, 9)
    P = 160
    for mt in range(2):
        for nt in range(2):
            a(f'v_cvt_pk_bf16_f32 v{P+4*mt+2*nt}, v{ACC+mt*8+nt*4}, v{ACC+mt*8+nt*4+1}')
            a(f'v_cvt_pk_bf16_f32 v{P+4*mt+2*nt+1}, v{ACC+mt*8+nt*4+2}, v{ACC+mt*8+nt*4+3}')
    a('s_nop 1')
    for mt in range(2):
        a(f'v_permlane16_swap_b32 v{P+4*mt}, v{P+4*mt+2}')
        a(f'v_permlane16_swap_b32 v{P+4*mt+1}, v{P+4*mt+3}')
    a(f'v_and_b32 v{t1}, 15, v{vL}')
    a(f's_lshl_b32 s{sTmp}, s{sRB}, 6')
    a(f's_lshr_b32 s{sTmp2}, s{sW}, 1')
    a(f's_lshl_b32 s{sTmp2}, s{sTmp2}, 5')
    a(f's_add_u32 s{sTmp}, s{sTmp}, s{sTmp2}')
    a(f'v_add_u32 v{t1}, s{sTmp}, v{t1}')
    a(f'v_mul_u32_u24 v{t1}, 896, v{t1}')
    a(f'v_bfe_u32 v{t2}, v{vL}, 4, 1')
    a(f'v_lshl_add_u32 v{t1}, v{t2}, 5, v{t1}')
    a(f'v_bfe_u32 v{t2}, v{vL}, 5, 1')
    a(f'v_lshl_add_u32 v{t1}, v{t2}, 4, v{t1}')
    a(f's_lshl_b32 s{sTmp}, s{sCB}, 7')
    a(f's_and_b32 s{sTmp2}, s{sW}, 1')
    a(f's_lshl_b32 s{sTmp2}, s{sTmp2}, 6')
    a(f's_add_u32 s{sTmp}, s{sTmp}, s{sTmp2}')
    a(f's_add_u32 s{sTmp2}, s{sTmp}, {16*896}')
    a(f'buffer_store_dwordx4 {vr(P,4)}, v{t1}, s[{SO}:{SO+3}], s{sTmp} offen')
    a(f'buffer_store_dwordx4 {vr(P+4,4)}, v{t1}, s[{SO}:{SO+3}], s{sTmp2} offen')
    stamp(a, 10)
    stamp_end(a, sWS, sW, 2, 12, 0x2100000)
    a.label('K2_END')
    a('s_endpgm')
    kernel_desc(a, name, 224)

def gen_k3(a):
    name = 'k3_kernel'
    kernel_header(a, name)
    sWS, sOut = 4, 6
    sW, sTmp, sTmp2, sRB, sCB, sOffY, sOffG, sM0 = 8, 9, 10, 11, 36, 37, 38, 39
    SY, SG, SBb, SGT, SO = 12, 16, 20, 24, 28
    a('s_cmp_ge_u32 s2, 224')
    a('s_cbranch_scc1 K3_END')
    stamp_begin(a)
    a('s_load_dwordx2 s[4:5], s[0:1], 80')
    a('s_load_dwordx2 s[6:7], s[0:1], 64')
    a('v_lshrrev_b32 v1, 6, v0')
    a('s_nop 0')
    a(f'v_readfirstlane_b32 s{sW}, v1')
    a(f's_and_b32 s{sRB}, s2, 7')
    a(f's_lshl_b32 s{sRB}, s{sRB}, 2')
    a(f's_lshr_b32 s{sTmp}, s2, 3')
    a(f's_and_b32 s{sTmp2}, s{sTmp}, 3')
    a(f's_add_u32 s{sRB}, s{sRB}, s{sTmp2}')
    a(f's_lshr_b32 s{sCB}, s{sTmp}, 2')
    a('s_getpc_b64 s[34:35]')
    a('s_add_u32 s34, s34, tblG@rel32@lo+4')
    a('s_addc_u32 s35, s35, tblG@rel32@hi+12')
    a('s_waitcnt lgkmcnt(0)')
    srd_off(a, SY, sWS, sWS + 1, WS_Y1T, 448 * 4096)
    srd(a, SG, 34, 35, 448 * 896)
    srd_off(a, SBb, sWS, sWS + 1, WS_B, S * D * 2)
    srd_off(a, SGT, sWS, sWS + 1, WS_GATE, 2048 * 4)
    srd(a, SO, sOut, sOut + 1, S * D * 2)
    vL = 1
    vYd, vGd = 2, 4
    vYr, vGr = 6, 8
    vO, vGo = 10, 11
    t0, t1, t2, t3 = 12, 13, 14, 15
    ACC = 32
    YF = [48, 56]
    GF = [64, 72]
    BV = 80
    GV = 88
    a(f'v_and_b32 v{vL}, 63, v0')
    a(f'v_lshrrev_b32 v{t0}, 3, v{vL}')
    a(f's_lshl_b32 s{sTmp}, s{sW}, 4')
    a(f'v_add_u32 v{t0}, s{sTmp}, v{t0}')
    a(f'v_bfe_u32 v{t1}, v{vL}, 4, 1')
    a(f'v_bfe_u32 v{t2}, v{vL}, 1, 2')
    a(f'v_xor_b32 v{t2}, v{t2}, v{t1}')
    a(f'v_and_b32 v{t1}, 1, v{vL}')
    a(f'v_lshlrev_b32 v{t1}, 4, v{t1}')
    a(f'v_lshl_add_u32 v{t1}, v{t2}, 5, v{t1}')
    a(f'v_xor_b32 v{t2}, 64, v{t1}')
    a(f'v_lshlrev_b32 v{t3}, 12, v{t0}')
    a(f's_lshl_b32 s{sTmp}, s{sRB}, 7')
    a(f'v_add_u32 v{t3}, s{sTmp}, v{t3}')
    a(f'v_add_u32 v{vYd}, v{t3}, v{t1}')
    a(f'v_add_u32 v{vYd+1}, v{t3}, v{t2}')
    a(f'v_add_u32 v{vYd+1}, {8*4096}, v{vYd+1}')
    a(f'v_mul_u32_u24 v{t3}, 896, v{t0}')
    a(f's_lshl_b32 s{sTmp}, s{sCB}, 7')
    a(f'v_add_u32 v{t3}, s{sTmp}, v{t3}')
    a(f'v_add_u32 v{vGd}, v{t3}, v{t1}')
    a(f'v_add_u32 v{vGd+1}, v{t3}, v{t2}')
    a(f'v_add_u32 v{vGd+1}, {8*896}, v{vGd+1}')
    a(f's_lshl_b32 s{sM0}, s{sW}, 11')
    for st in range(7):
        a(f's_mov_b32 s{sOffY}, {st*64*4096}')
        a(f's_mov_b32 s{sOffG}, {st*64*896}')
        for j in range(2):
            a(f's_add_u32 m0, s{sM0}, {st*16384 + j*1024}')
            a('s_nop 0')
            a(f'buffer_load_dwordx4 v{vYd+j}, s[{SY}:{SY+3}], s{sOffY} offen lds')
            a(f's_add_u32 m0, s{sM0}, {st*16384 + 8192 + j*1024}')
            a('s_nop 0')
            a(f'buffer_load_dwordx4 v{vGd+j}, s[{SG}:{SG+3}], s{sOffG} offen lds')
    a(f'v_and_b32 v{t1}, 15, v{vL}')
    a(f's_lshl_b32 s{sTmp}, s{sRB}, 6')
    a(f's_lshr_b32 s{sTmp2}, s{sW}, 1')
    a(f's_lshl_b32 s{sTmp2}, s{sTmp2}, 5')
    a(f's_add_u32 s{sTmp}, s{sTmp}, s{sTmp2}')
    a(f'v_add_u32 v{t1}, s{sTmp}, v{t1}')
    a(f'v_lshlrev_b32 v{vGo}, 2, v{t1}')
    a(f'v_mul_u32_u24 v{t1}, 896, v{t1}')
    a(f'v_bfe_u32 v{t2}, v{vL}, 4, 1')
    a(f'v_lshl_add_u32 v{t1}, v{t2}, 5, v{t1}')
    a(f'v_bfe_u32 v{t2}, v{vL}, 5, 1')
    a(f'v_lshl_add_u32 v{t1}, v{t2}, 4, v{t1}')
    a(f's_lshl_b32 s{sTmp}, s{sCB}, 7')
    a(f's_and_b32 s{sTmp2}, s{sW}, 1')
    a(f's_lshl_b32 s{sTmp2}, s{sTmp2}, 6')
    a(f's_add_u32 s{sTmp}, s{sTmp}, s{sTmp2}')
    a(f'v_add_u32 v{vO}, s{sTmp}, v{t1}')
    a(f's_mov_b32 s{sOffY}, {16*896}')
    a(f'buffer_load_dwordx4 {vr(BV,4)}, v{vO}, s[{SBb}:{SBb+3}], 0 offen')
    a(f'buffer_load_dwordx4 {vr(BV+4,4)}, v{vO}, s[{SBb}:{SBb+3}], s{sOffY} offen')
    a(f'buffer_load_dword v{GV}, v{vGo}, s[{SGT}:{SGT+3}], 0 offen')
    a(f'buffer_load_dword v{GV+1}, v{vGo}, s[{SGT}:{SGT+3}], 0 offen offset:64')
    NE = 4
    a(f'v_lshrrev_b32 v{t2}, 4, v{vL}')
    a(f'v_bfe_u32 v{t0}, v{vL}, 2, 2')
    a(f'v_lshl_add_u32 v{t1}, v{t2}, 3, v{t0}')
    a(f'v_lshlrev_b32 v{t1}, 7, v{t1}')
    a(f'v_and_b32 v{t3}, 3, v{vL}')
    a(f'v_lshl_add_u32 v{t1}, v{t3}, 3, v{t1}')
    a(f'v_lshrrev_b32 v{t0}, 1, v{t0}')
    a(f'v_and_b32 v{t2}, 1, v{t2}')
    a(f'v_lshl_or_b32 v{t0}, v{t2}, 1, v{t0}')
    a(f's_and_b32 s{sTmp}, s{sW}, 2')
    a(f'v_xor_b32 v{t2}, s{sTmp}, v{t0}')
    a(f'v_lshl_add_u32 v{vYr}, v{t2}, 5, v{t1}')
    a(f'v_xor_b32 v{vYr+1}, 32, v{vYr}')
    a(f's_and_b32 s{sTmp}, s{sW}, 1')
    a(f's_lshl_b32 s{sTmp}, s{sTmp}, 1')
    a(f'v_xor_b32 v{t2}, s{sTmp}, v{t0}')
    a(f'v_lshl_add_u32 v{vGr}, v{t2}, 5, v{t1}')
    a(f'v_add_u32 v{vGr}, 8192, v{vGr}')
    a(f'v_xor_b32 v{vGr+1}, 32, v{vGr}')
    vYr2, vGr2 = 16, 18
    for i in range(2):
        a(f'v_add_u32 v{vYr2+i}, 0x10000, v{vYr+i}')
        a(f'v_add_u32 v{vGr2+i}, 0x10000, v{vGr+i}')
    for i in range(16):
        a(f'v_mov_b32 v{ACC+i}, 0')
    stamp(a, 1)
    for st in range(7):
        a(f's_waitcnt vmcnt({(6-st)*4 + NE})')
        a('s_barrier')
        stamp(a, 2 + st)
        yb, gb, off = (vYr, vGr, st * 16384) if st < 4 else (vYr2, vGr2, (st - 4) * 16384)
        for h in range(2):
            for t in range(2):
                for u in range(2):
                    a(f'ds_read_b64_tr_b16 {vr(YF[h]+t*4+u*2,2)}, v{yb+t} offset:{off + h*4096 + u*512}')
                    a(f'ds_read_b64_tr_b16 {vr(GF[h]+t*4+u*2,2)}, v{gb+t} offset:{off + h*4096 + u*512}')
        for h in range(2):
            a(f's_waitcnt lgkmcnt({8 if h == 0 else 0})')
            for mt in range(2):
                for nt in range(2):
                    acc = vr(ACC + mt * 8 + nt * 4, 4)
                    a(f'v_mfma_f32_16x16x32_bf16 {acc}, {vr(GF[h]+nt*4,4)}, {vr(YF[h]+mt*4,4)}, {acc}')
    stamp(a, 9)
    a('s_waitcnt vmcnt(0)')
    a('s_nop 7')
    for mt in range(2):
        for r in range(4):
            a(f'v_permlane16_swap_b32 v{ACC+mt*8+r}, v{ACC+mt*8+4+r}')
    OM = 90
    for mt in range(2):
        a(f'v_sub_f32 v{OM+mt}, 1.0, v{GV+mt}')
    a(f'v_cvt_pk_bf16_f32 v{t0}, v{OM}, v{OM+1}')
    a(f'v_lshlrev_b32 v{OM}, 16, v{t0}')
    a(f'v_and_b32 v{OM+1}, 0xffff0000, v{t0}')
    T = 48
    for mt in range(2):
        A_ = ACC + mt * 8
        P = 92 + mt * 4
        G2, O2 = 100 + mt * 4, 102 + mt * 4
        a(f'v_mov_b32 v{G2}, v{GV+mt}'); a(f'v_mov_b32 v{G2+1}, v{GV+mt}')
        a(f'v_mov_b32 v{O2}, v{OM+mt}'); a(f'v_mov_b32 v{O2+1}, v{OM+mt}')
        for p in range(4):
            round_bf16_pair(a, A_ + 2 * p, A_ + 2 * p + 1, A_ + 2 * p, A_ + 2 * p + 1, T + p)
        for p in range(4):
            a(f'v_pk_mul_f32 {cp(A_+2*p)}, {cp(A_+2*p)}, {cp(G2)}')
        for p in range(4):
            round_bf16_pair(a, A_ + 2 * p, A_ + 2 * p + 1, A_ + 2 * p, A_ + 2 * p + 1, T + p)
        for p in range(4):
            a(f'v_lshlrev_b32 v{T+8+2*p}, 16, v{BV+mt*4+p}')
            a(f'v_and_b32 v{T+9+2*p}, 0xffff0000, v{BV+mt*4+p}')
        for p in range(4):
            a(f'v_pk_mul_f32 {cp(T+8+2*p)}, {cp(T+8+2*p)}, {cp(O2)}')
        for p in range(4):
            round_bf16_pair(a, T + 8 + 2 * p, T + 9 + 2 * p, T + 8 + 2 * p, T + 9 + 2 * p, T + p)
        for p in range(4):
            a(f'v_pk_add_f32 {cp(A_+2*p)}, {cp(A_+2*p)}, {cp(T+8+2*p)}')
        for p in range(4):
            a(f'v_cvt_pk_bf16_f32 v{P+p}, v{A_+2*p}, v{A_+2*p+1}')
        if mt == 0:
            a(f'buffer_store_dwordx4 {vr(P,4)}, v{vO}, s[{SO}:{SO+3}], 0 offen')
        else:
            a(f'buffer_store_dwordx4 {vr(P,4)}, v{vO}, s[{SO}:{SO+3}], s{sOffY} offen')
    stamp(a, 10)
    stamp_end(a, sWS, sW, 2, 12, 0x2200000)
    a.label('K3_END')
    a('s_endpgm')
    kernel_desc(a, name, 112)

def gen_tables(a):
    a.raw('.altmacro')
    for i in range(448):
        c = math.cos(2 * math.pi * i / 448); s = math.sin(2 * math.pi * i / 448)
        if i % 112 == 0:
            c = [1.0, 0.0, -1.0, 0.0][i // 112]; s = [0.0, 1.0, 0.0, -1.0][i // 112]
        sc = 1.0 / (448 * 2048)
        a.raw(f'.set CF_{i}, {bf16bits(c)}')
        a.raw(f'.set SF_{i}, {bf16bits(-s)}')
        a.raw(f'.set CG1_{i}, {bf16bits(c*sc)}')
        a.raw(f'.set CG2_{i}, {bf16bits(2*c*sc)}')
        a.raw(f'.set SG_{i}, {bf16bits(-2*s*sc)}')
    for n in ('CF', 'SF', 'CG1', 'CG2', 'SG'):
        a.raw(f'.macro em{n} idx')
        a.raw(f'  .short {n}_\\idx')
        a.raw('.endm')
    a.raw('.section .rodata,"a"')
    a.raw('.p2align 8')
    a.raw('.type tblF,@object')
    a.label('tblF')
    a.raw('''.set td, 0
.rept 448
  .set tc, 0
  .rept 225
    emCF %((td*tc)%448)
    .set tc, tc+1
  .endr
  .set tc, 1
  .rept 223
    emSF %((td*tc)%448)
    .set tc, tc+1
  .endr
  .fill 64, 2, 0
  .set td, td+1
.endr''')
    a.raw('.p2align 8')
    a.raw('.type tblG,@object')
    a.label('tblG')
    a.raw('''.set td, 0
.rept 448
  emCG1 0
.endr
.set tc, 1
.rept 223
  .set td, 0
  .rept 448
    emCG2 %((td*tc)%448)
    .set td, td+1
  .endr
  .set tc, tc+1
.endr
.set td, 0
.rept 448
  emCG1 %((td*224)%448)
  .set td, td+1
.endr
.set tc, 1
.rept 223
  .set td, 0
  .rept 448
    emSG %((td*tc)%448)
    .set td, td+1
  .endr
  .set tc, tc+1
.endr''')

def gen_tw(a):
    a.raw('.p2align 8')
    a.raw('.type tblTW,@object')
    a.label('tblTW')
    def ent(n, N):
        an = -2 * math.pi * n / N
        return f32bits(math.cos(an)), f32bits(math.sin(an))
    vals = [ent(T, 2048) for T in range(256)] + [ent(j, 256) for j in range(32)] + [ent(j, 32) for j in range(4)]
    for i in range(0, len(vals), 4):
        a.raw('  .long ' + ', '.join(f'{hex(x)}, {hex(y)}' for x, y in vals[i:i+4]))

HEADER = open('cdna_kernels/' + NAME + '.s.ref').read().split('; Override launch')[0]

def main(out):
    a = Asm()
    a.raw(HEADER.rstrip('\n'))
    launches = [('k1_kernel', (256, 1, 1), (512, 1, 1), 147456 + 8192),
                ('k2_kernel', (N_F2 + 225, 1, 1), (256, 1, 1), 65536),
                ('k3_kernel', (224, 1, 1), (256, 1, 1), 114688)]
    for k, g, b, l in launches:
        a.raw(f'; @launch kernel={k} grid=({g[0]},{g[1]},{g[2]}) block=({b[0]},{b[1]},{b[2]}) lds={l}')
    a.raw('.amdgcn_target "amdgcn-amd-amdhsa--gfx950"')
    gen_k1(a)
    gen_k2(a)
    gen_k3(a)
    gen_tables(a)
    gen_tw(a)
    open(out, 'w').write('\n'.join(a.L) + '\n')

if __name__ == '__main__':
    if len(sys.argv) > 2 and sys.argv[2].startswith('stamp'): STAMP = True
    if len(sys.argv) > 2 and sys.argv[2] == 'stamp2': STAMP2 = True
    main(sys.argv[1] if len(sys.argv) > 1 else 'k.s')
```

```python
import sys
from gen import *
from bw3_gen_core import gen_bw
def gen_touch(a, name, gran, total):
    kernel_header(a, name)
    a('s_load_dwordx2 s[4:5], s[0:1], 80')
    a('s_lshl_b32 s3, s2, 8')
    a('v_add_u32 v1, s3, v0')
    a(f's_mov_b32 s21, {gran}')
    a('v_mul_lo_u32 v1, v1, s21')
    a('s_waitcnt lgkmcnt(0)')
    srd(a, 8, 4, 5, total)
    a('buffer_load_dword v2, v1, s[8:11], 0 offen')
    a('s_waitcnt vmcnt(0)')
    a('s_endpgm')
    kernel_desc(a, name, 32)
gran = int(sys.argv[1])
a = Asm()
a.raw(HEADER.rstrip('\n'))
cfgs = []; i = 0; base = 0
for share in (1, 4, 32):
    for nw, per in ((4, 28), (4, 8)):
        cfgs.append((f'bw{i}_kernel', share, nw, per, 1024, 1024, base)); i += 1
        base += (256 // min(share, 32)) * nw * per * 1024
        base = (base + (1 << 20)) & ~((1 << 20) - 1)
total = base
n = (total // max(gran,1) + 255) // 256
if gran > 0:
    a.raw(f'; @launch kernel=touch_kernel grid=({n*8},1,1) block=(256,1,1) lds=0')
for c in cfgs:
    a.raw(f'; @launch kernel={c[0]} grid=(256,1,1) block=({c[2]*64},1,1) lds={c[2]*c[3]*1024}')
a.raw('.amdgcn_target "amdgcn-amd-amdhsa--gfx950"')
if gran > 0:
    kernel_header(a, 'touch_kernel')
    a('s_load_dwordx2 s[4:5], s[0:1], 80')
    a('s_lshr_b32 s3, s2, 3')
    a('s_lshl_b32 s3, s3, 8')
    a('v_add_u32 v1, s3, v0')
    a(f's_mov_b32 s21, {gran}')
    a('v_mul_lo_u32 v1, v1, s21')
    a('s_waitcnt lgkmcnt(0)')
    srd(a, 8, 4, 5, total)
    a('buffer_load_dword v2, v1, s[8:11], 0 offen')
    a('s_waitcnt vmcnt(0)')
    a('s_endpgm')
    kernel_desc(a, 'touch_kernel', 32)
for c in cfgs:
    gen_bw(a, *c)
open(f'bw4_{gran}.s', 'w').write('\n'.join(a.L) + '\n')
import json; json.dump(cfgs, open('bw4.json', 'w'))
```

```python
import math, struct, sys
import numpy as np

NAME = 'gated_mix__spectral_gfnet__glu_gated_geglu__prompt'
S, D, F = 2048, 448, 1792
WS_H    = 0x0000000
WS_X1T  = 0x0800000
WS_WT   = 0x0C00000
WS_GATE = 0x0E00000
WS_Y1T  = 0x0F00000
WS_B    = 0x1100000
WS_CNT  = 0x1300000

def f32bits(x):
    return struct.unpack('<I', struct.pack('<f', x))[0]

def bf16bits(x):
    u = f32bits(np.float32(x))
    r = (u + 0x7FFF + ((u >> 16) & 1)) >> 16
    return r & 0xFFFF

class Asm:
    def __init__(self):
        self.L = []
    def capture(self, fn, *args):
        keep = self.L
        self.L = []
        fn(*args)
        out = self.L
        self.L = keep
        return out
    def emit(self, line):
        self.L.append(line)
    def __call__(self, s):
        import re
        m = re.search(r'offset:(\d+)', s)
        if m:
            lim = 4095 if s.startswith('buffer_') else 65535
            assert int(m.group(1)) <= lim, s
        self.L.append('  ' + s)
    def label(self, s):
        self.L.append(s + ':')
    def raw(self, s):
        self.L.append(s)
    def c(self, s):
        self.L.append('  ; ' + s)

def vr(b, n=1):
    return f'v{b}' if n == 1 else f'v[{b}:{b+n-1}]'
def sr(b, n=1):
    return f's{b}' if n == 1 else f's[{b}:{b+n-1}]'

def srd(a, d, lo, hi, nbytes):
    a(f's_mov_b32 s{d}, s{lo}')
    a(f's_and_b32 s{d+1}, s{hi}, 0xffff')
    a(f's_mov_b32 s{d+2}, {nbytes}')
    a(f's_mov_b32 s{d+3}, 0x00020000')

def srd_off(a, d, lo, hi, off, nbytes):
    a(f's_add_u32 s{d}, s{lo}, {off}')
    a(f's_addc_u32 s{d+1}, s{hi}, 0')
    a(f's_and_b32 s{d+1}, s{d+1}, 0xffff')
    a(f's_mov_b32 s{d+2}, {nbytes}')
    a(f's_mov_b32 s{d+3}, 0x00020000')

def kernel_header(a, name):
    a.raw('.text')
    a.raw(f'.globl {name}')
    a.raw('.p2align 8')
    a.raw(f'.type {name},@function')
    a.label(name)

def kernel_desc(a, name, vgpr, sgpr=102):
    acc = (vgpr + 3) // 4 * 4
    a.raw('.section .rodata,"a"')
    a.raw('.p2align 6')
    a.raw(f'.amdhsa_kernel {name}')
    a.raw(f'  .amdhsa_next_free_vgpr {vgpr}')
    a.raw(f'  .amdhsa_next_free_sgpr {sgpr}')
    a.raw(f'  .amdhsa_accum_offset {acc}')
    a.raw('  .amdhsa_group_segment_fixed_size 0')
    a.raw('  .amdhsa_kernarg_size 88')
    a.raw('  .amdhsa_user_sgpr_count 2')
    a.raw('  .amdhsa_user_sgpr_kernarg_segment_ptr 1')
    a.raw('  .amdhsa_system_sgpr_workgroup_id_x 1')
    a.raw('  .amdhsa_float_denorm_mode_32 3')
    a.raw('.end_amdhsa_kernel')

STAMP = False
STAMP2 = False
import os
EXP = os.environ.get('EXP', '')
STFLAG = os.environ.get('STFLAG', '')
def stamp(a, idx):
    if STAMP:
        a(f's_memtime s[{76+2*idx}:{77+2*idx}]')
def stamp_flush(a, n, sWSlo, sW, scr_v, srd_s, extra=None, region=0x2000000):
    if not STAMP: return
    a('s_waitcnt lgkmcnt(0)')
    srd_off(a, srd_s, sWSlo, sWSlo+1, region, 0x100000)
    a(f's_lshl_b32 s74, s2, 3')
    a(f's_add_u32 s74, s74, s{sW}')
    a(f's_lshl_b32 s74, s74, 6')
    a(f'v_mov_b32 v{scr_v}, s74')
    a('s_mov_b64 exec, 1')
    for i in range(n):
        a(f'v_mov_b32 v{scr_v+1}, s{76+2*i}')
        a(f'buffer_store_dword v{scr_v+1}, v{scr_v}, s[{srd_s}:{srd_s+3}], 0 offen offset:{4*i}')
        a('s_nop 1')
    if extra is not None:
        a(f'v_mov_b32 v{scr_v+1}, s{extra}')
        a(f'buffer_store_dword v{scr_v+1}, v{scr_v}, s[{srd_s}:{srd_s+3}], 0 offen offset:60')
    a('s_mov_b64 exec, -1')
def stamp_begin(a):
    if STAMP:
        stamp(a, 0)
        a('s_memrealtime s[100:101]')
def stamp_end(a, sWS, sW, scr_v, srd_s, region):
    if not STAMP: return
    a('s_waitcnt vmcnt(0)')
    stamp(a, 11)
    a('s_waitcnt lgkmcnt(0)')
    a('s_mov_b32 s75, s100')
    a('s_memrealtime s[100:101]')
    a('s_waitcnt lgkmcnt(0)')
    a('s_sub_u32 s74, s100, s75')
    a('s_add_u32 s100, s74, s76')
    stamp_flush(a, 13, sWS, sW, scr_v, srd_s, extra=75, region=region)
LOG2E = 1.4426950408889634
GC0 = -2.0 * LOG2E * math.sqrt(2.0 / math.pi)
GC1 = GC0 * 0.044715

def round_bf16_pair(a, d0, d1, s0, s1, tmp):
    a(f'v_cvt_pk_bf16_f32 v{tmp}, v{s0}, v{s1}')
    a(f'v_lshlrev_b32 v{d0}, 16, v{tmp}')
    a(f'v_and_b32 v{d1}, 0xffff0000, v{tmp}')

def gen_k1(a):
    name = 'k1_kernel'
    kernel_header(a, name)
    sX, sWg, sWu, sWr, sWi, sGW, sWS = 4, 6, 8, 10, 12, 14, 16
    SA, SBG, SBU, SO = 20, 24, 28, 32
    SWR, SWI, SWT, SGWs, SGATE = 36, 40, 44, 48, 52
    sCB, sRB, sW, sStride, sKB, sTmp, sTmp2, sIsD = 56, 57, 58, 59, 60, 61, 62, 63
    sM0A, sM0B = 64, 65
    sOffA, sOffB = 66, 67
    sMt = 68
    sC = 98
    a('s_cmp_ge_u32 s2, 256')
    a('s_cbranch_scc1 K1_END')
    stamp(a, 0)
    if STAMP: a('s_memrealtime s[100:101]')
    a('s_load_dwordx2 s[4:5], s[0:1], 0')
    a('s_load_dwordx2 s[6:7], s[0:1], 32')
    a('s_load_dwordx2 s[8:9], s[0:1], 40')
    a('s_load_dwordx2 s[10:11], s[0:1], 8')
    a('s_load_dwordx2 s[12:13], s[0:1], 16')
    a('s_load_dwordx2 s[14:15], s[0:1], 56')
    a('s_load_dwordx2 s[16:17], s[0:1], 80')
    a('s_load_dwordx2 s[72:73], s[0:1], 48')
    a('v_lshrrev_b32 v1, 6, v0')
    a('s_nop 0')
    a(f'v_readfirstlane_b32 s{sW}, v1')
    sG, sJ = 74, 75
    a(f's_and_b32 s{sRB}, s2, 1')
    a(f's_lshl_b32 s{sRB}, s{sRB}, 2')
    a(f's_lshr_b32 s{sJ}, s2, 3')
    a(f's_and_b32 s{sTmp}, s{sJ}, 3')
    a(f's_add_u32 s{sRB}, s{sRB}, s{sTmp}')
    a(f's_bfe_u32 s{sG}, s2, 0x20001')
    a(f's_lshr_b32 s{sTmp2}, s2, 5')
    a(f's_add_u32 s{sTmp2}, s{sTmp2}, 7')
    a(f's_and_b32 s{sTmp2}, s{sTmp2}, 7')
    a(f's_getpc_b64 s[18:19]')
    a(f's_add_u32 s18, s18, tblF@rel32@lo+4')
    a(f's_addc_u32 s19, s19, tblF@rel32@hi+12')
    a('s_waitcnt lgkmcnt(0)')
    if STAMP2: stamp(a, 3)
    srd(a, SA, sX, sX + 1, S * D * 2)
    srd(a, SWR, sWr, sWr + 1, S * 225 * 2)
    srd(a, SWI, sWi, sWi + 1, S * 225 * 2)
    srd(a, SGWs, sGW, sGW + 1, D * 2)
    srd_off(a, SWT, sWS, sWS + 1, WS_WT, 225 * 8192)
    srd_off(a, SGATE, sWS, sWS + 1, WS_GATE, WS_CNT - WS_GATE + 4096)
    STC = 88
    a('s_getpc_b64 s[28:29]')
    a('s_add_u32 s28, s28, tblG@rel32@lo+4')
    a('s_addc_u32 s29, s29, tblG@rel32@hi+12')
    bufs = [(72, F*D*2), (28, 448*896 + 2560)] + [(sX, 0)] * 6
    a(f's_mov_b32 s{STC}, s{bufs[0][0]}')
    a(f's_mov_b32 s{STC+1}, s{bufs[0][0]+1}')
    a(f's_mov_b32 s{STC+2}, {bufs[0][1]}')
    a(f's_mov_b32 s{sOffA}, {(bufs[0][1] + 255)//256}')
    for i in range(1, 3):
        a(f's_cmp_{"eq" if i == 1 else "ge"}_u32 s{sW}, {i}')
        a(f's_cselect_b32 s{STC}, s{bufs[i][0]}, s{STC}')
        a(f's_cselect_b32 s{STC+1}, s{bufs[i][0]+1}, s{STC+1}')
        a(f's_cselect_b32 s{STC+2}, {bufs[i][1]}, s{STC+2}')
        a(f's_cselect_b32 s{sOffA}, {(bufs[i][1] + 255)//256}, s{sOffA}')
    a(f's_and_b32 s{STC+1}, s{STC+1}, 0xffff')
    a(f's_mov_b32 s{STC+3}, 0x00020000')
    a(f'v_and_b32 v1, 63, v0')
    a(f'v_lshlrev_b32 v30, 7, v1')
    a(f'v_mov_b32 v3, 0x7f000000')
    a(f'v_cmp_gt_u32 vcc, s{sOffA}, v30')
    a(f's_mul_i32 s87, s{sOffA}, s2')
    a(f's_and_b32 s87, s87, 0xfffffffc')
    a(f'v_cndmask_b32 v30, v3, v30, vcc')
    a(f's_cmp_ge_u32 s{sTmp2}, 7')
    a(f's_cselect_b32 s{sIsD}, 1, 0')
    a('s_cbranch_scc1 K1_SETUP_DFT')
    a(f's_mul_i32 s{sCB}, s{sG}, 7')
    a(f's_add_u32 s{sCB}, s{sCB}, s{sTmp2}')
    a(f's_lshl_b32 s{sTmp}, s{sCB}, 7')
    a(f's_add_u32 s{SBG}, s{sWg}, s{sTmp}')
    a(f's_addc_u32 s{SBG+1}, s{sWg+1}, 0')
    a(f's_and_b32 s{SBG+1}, s{SBG+1}, 0xffff')
    a(f's_sub_u32 s{SBG+2}, {D*F*2}, s{sTmp}')
    a(f's_mov_b32 s{SBG+3}, 0x00020000')
    a(f's_add_u32 s{SBU}, s{sWu}, s{sTmp}')
    a(f's_addc_u32 s{SBU+1}, s{sWu+1}, 0')
    a(f's_and_b32 s{SBU+1}, s{SBU+1}, 0xffff')
    a(f's_sub_u32 s{SBU+2}, {D*F*2}, s{sTmp}')
    a(f's_mov_b32 s{SBU+3}, 0x00020000')
    a(f's_mov_b32 s{sStride}, 3584')
    srd_off(a, SO, sWS, sWS + 1, WS_H, S * F * 2)
    a('s_branch K1_SETUP_DONE')
    a.label('K1_SETUP_DFT')
    a(f's_mov_b32 s{sCB}, s{sG}')
    a(f's_lshl_b32 s{sTmp}, s{sCB}, 8')
    a(f's_add_u32 s{SBG}, s18, s{sTmp}')
    a(f's_addc_u32 s{SBG+1}, s19, 0')
    a(f's_and_b32 s{SBG+1}, s{SBG+1}, 0xffff')
    a(f's_sub_u32 s{SBG+2}, {448*1024}, s{sTmp}')
    a(f's_mov_b32 s{SBG+3}, 0x00020000')
    a(f's_add_u32 s{sTmp}, s{sTmp}, 128')
    a(f's_add_u32 s{SBU}, s18, s{sTmp}')
    a(f's_addc_u32 s{SBU+1}, s19, 0')
    a(f's_and_b32 s{SBU+1}, s{SBU+1}, 0xffff')
    a(f's_sub_u32 s{SBU+2}, {448*1024}, s{sTmp}')
    a(f's_mov_b32 s{SBU+3}, 0x00020000')
    a(f's_mov_b32 s{sStride}, 1024')
    srd_off(a, SO, sWS, sWS + 1, WS_X1T, 448 * 8192)
    a.label('K1_SETUP_DONE')
    a('s_mov_b32 s4, s88')
    a('s_mov_b32 s5, s89')
    a('s_mov_b32 s6, s90')
    a('s_mov_b32 s7, 0x00020000')
    a('s_mov_b32 s8, s87')

    vL = 1
    vAd = 2
    vBd = 6
    vAr = 7
    vBr = 11
    vT = 13
    vP = 32
    ACC = 64
    AF = [128, 144]
    BF = [160, 176]
    t0, t1, t2 = vT, vT + 1, vT + 2
    a(f'v_and_b32 v{vL}, 63, v0')
    a(f'v_lshrrev_b32 v{t0}, 3, v{vL}')
    a(f's_lshl_b32 s{sTmp}, s{sRB}, 8')
    a(f's_lshl_b32 s{sTmp2}, s{sW}, 5')
    a(f's_add_u32 s{sTmp}, s{sTmp}, s{sTmp2}')
    a(f'v_add_u32 v{t0}, s{sTmp}, v{t0}')
    a(f'v_mul_u32_u24 v{t0}, 896, v{t0}')
    a(f'v_lshrrev_b32 v{t1}, 4, v{vL}')
    a(f'v_and_b32 v{t2}, 7, v{vL}')
    a(f'v_xor_b32 v{t2}, v{t2}, v{t1}')
    a(f'v_xor_b32 v{t1}, 4, v{t2}')
    for j in range(4):
        a(f'v_lshl_add_u32 v{vAd+j}, v{t1 if j & 1 else t2}, 4, v{t0}')
        if j:
            a(f'v_add_u32 v{vAd+j}, {j*8*896}, v{vAd+j}')
    a(f'v_lshrrev_b32 v{t0}, 3, v{vL}')
    a(f's_lshl_b32 s{sTmp}, s{sW}, 3')
    a(f'v_add_u32 v{t0}, s{sTmp}, v{t0}')
    a(f'v_mul_lo_u32 v{t0}, v{t0}, s{sStride}')
    a(f'v_bfe_u32 v{t1}, v{vL}, 4, 1')
    a(f's_and_b32 s{sTmp2}, s{sW}, 1')
    a(f's_lshl_b32 s{sTmp2}, s{sTmp2}, 1')
    a(f'v_or_b32 v{t1}, s{sTmp2}, v{t1}')
    a(f'v_bfe_u32 v{t2}, v{vL}, 1, 2')
    a(f'v_xor_b32 v{t2}, v{t2}, v{t1}')
    a(f'v_lshl_add_u32 v{t0}, v{t2}, 5, v{t0}')
    a(f'v_and_b32 v{t2}, 1, v{vL}')
    a(f'v_lshl_add_u32 v{vBd}, v{t2}, 4, v{t0}')
    a(f's_lshl_b32 s{sM0A}, s{sW}, 12')
    a(f's_lshl_b32 s{sM0B}, s{sW}, 10')
    a(f's_add_u32 s{sM0B}, s{sM0B}, 98304')

    def stage_pieces(step):
        slot = step % 3
        def setup():
            a(f's_mov_b32 s{sOffA}, {step*128}')
            a(f's_mul_i32 s{sOffB}, s{sStride}, {step*64}')
        def pa(j):
            def f():
                a(f's_add_u32 m0, s{sM0A}, {slot*32768 + j*1024}')
                a('s_nop 0')
                a(f'buffer_load_dwordx4 v{vAd+j}, s[{SA}:{SA+3}], s{sOffA} offen lds')
            return f
        def pb(half):
            def f():
                a(f's_add_u32 m0, s{sM0B}, {slot*16384 + half*8192}')
                a('s_nop 0')
                sb = SBU if half else SBG
                a(f'buffer_load_dwordx4 v{vBd}, s[{sb}:{sb+3}], s{sOffB} offen lds')
            return f
        return [setup] + [pa(j) for j in range(4)] + [pb(0), pb(1)]
    def issue_stage(step):
        for f in stage_pieces(step):
            f()

    if STAMP2: stamp(a, 4)
    for st in range(2):
        issue_stage(st)
        if st == 0: a('s_barrier')
        if STAMP2: stamp(a, 5+st)
    vWTo = vT + 6
    vGo = vT + 7
    vWTr = vT + 8
    vX = 192
    vGW = 196
    NPL = 2
    def prep_loads():
        a(f'v_and_b32 v{t1}, 31, v0')
        a(f'v_lshlrev_b32 v{t1}, 7, v{t1}')
        a(f'v_lshrrev_b32 v{t2}, 5, v0')
        a(f'v_lshl_add_u32 v{t1}, v{t2}, 2, v{t1}')
        a(f'v_add_u32 v{t1}, {WS_CNT - WS_GATE}, v{t1}')
        a(f'v_mov_b32 v{t2}, 0x7f000000')
        a(f'v_cmp_gt_u32 vcc, 256, v0')
        a(f's_cmp_eq_u32 s2, 0')
        a(f's_cselect_b32 s{sTmp}, 0, 0x7f000000')
        a(f'v_cndmask_b32 v{t1}, v{t2}, v{t1}, vcc')
        a(f'v_cmp_le_u32 vcc, 225, v0')
        a('s_nop 1')
        a(f'v_cndmask_b32 v{t2}, 0, 1, vcc')
        a(f'buffer_store_dword v{t2}, v{t1}, s[{SGATE}:{SGATE+3}], s{sTmp} offen')
        a(f's_lshl_b32 s{sKB}, s2, 3')
        a(f's_add_u32 s{sKB}, s{sKB}, s{sW}')
        a(f's_mul_i32 s{sTmp2}, s{sKB}, 896')
        a(f'v_lshlrev_b32 v{t1}, 4, v{vL}')
        a(f'v_mov_b32 v{t2}, 0x7f000000')
        a(f'v_cmp_gt_u32 vcc, 56, v{vL}')
        a('s_nop 1')
        a(f'v_cndmask_b32 v{t2}, v{t2}, v{t1}, vcc')
        a(f'buffer_load_dwordx4 {vr(vX,4)}, v{t2}, s[{SA}:{SA+3}], s{sTmp2} offen')
        a(f'buffer_load_dwordx4 {vr(vGW,4)}, v{t1}, s[{SGWs}:{SGWs+3}], 0 offen')
        a(f's_lshl_b32 s{sTmp}, s{sKB}, 2')
        a(f'v_mov_b32 v{vGo}, 0x7f000000')
        a(f'v_mov_b32 v{t1}, s{sTmp}')
        a(f'v_cmp_eq_u32 vcc, 63, v{vL}')
        a('s_nop 1')
        a(f'v_cndmask_b32 v{vGo}, v{vGo}, v{t1}, vcc')
    WBASE = 147456
    def wt_dma(tag):
        a(f's_lshr_b32 s{sTmp}, s2, 5')
        a(f's_bfe_u32 s{sTmp2}, s2, 0x30002')
        a(f's_lshl_b32 s{sTmp2}, s{sTmp2}, 3')
        a(f's_add_u32 s{sTmp}, s{sTmp}, s{sTmp2}')
        a(f's_and_b32 s{sTmp2}, s2, 3')
        a(f's_lshl_b32 s{sTmp2}, s{sTmp2}, 7')
        a(f's_add_u32 s{sTmp}, s{sTmp}, s{sTmp2}')
        a(f's_bfe_u32 s{sTmp2}, s{sW}, 0x10001')
        a(f's_lshl_b32 s{sTmp2}, s{sTmp2}, 6')
        a(f's_add_u32 s{sTmp}, s{sTmp}, s{sTmp2}')
        a(f's_and_b32 s{sTmp2}, s{sW}, 1')
        a(f's_lshl_b32 s{sTmp2}, s{sTmp2}, 10')
        a(f's_add_u32 s{sTmp}, s{sTmp}, s{sTmp2}')
        a(f's_mul_i32 s{sTmp}, s{sTmp}, 450')
        a(f's_and_b32 s{sTmp}, s{sTmp}, 0xfffffffc')
        a(f'v_lshrrev_b32 v{t1}, 5, v{vL}')
        a(f'v_mul_u32_u24 v{t1}, {512*450}, v{t1}')
        a(f'v_and_b32 v{t2}, 31, v{vL}')
        a(f'v_lshl_add_u32 v{t1}, v{t2}, 4, v{t1}')
        a(f's_lshl_b32 s{sTmp2}, s{sW}, 10')
        a(f's_add_u32 m0, s{sTmp2}, {WBASE}')
        a(f's_cmp_ge_u32 s{sW}, 4')
        a(f's_cbranch_scc1 K1_WT_IM_{tag}')
        a(f'buffer_load_dwordx4 v{t1}, s[{SWR}:{SWR+3}], s{sTmp} offen lds')
        a(f's_branch K1_WT_DONE_{tag}')
        a.label(f'K1_WT_IM_{tag}')
        a(f'buffer_load_dwordx4 v{t1}, s[{SWI}:{SWI+3}], s{sTmp} offen lds')
        a.label(f'K1_WT_DONE_{tag}')
        a(f's_bfe_u32 s{sTmp}, s2, 0x10005')
        a(f's_lshl_b32 s{sTmp}, s{sTmp}, 1')
        a(f's_add_u32 s{sTmp}, s{sTmp}, {WBASE}')
        a(f'v_and_b32 v{t1}, 255, v0')
        a(f'v_lshl_add_u32 v{vWTr}, v{t1}, 1, s{sTmp}')
        a(f's_lshl_b32 s{sTmp}, s2, 5')
        a(f'v_lshlrev_b32 v{vWTo}, 13, v0')
        a(f'v_add_u32 v{vWTo}, s{sTmp}, v{vWTo}')
    def wt_read():
        for sl in range(8):
            a(f'ds_read_u16 v{vP+sl}, v{vWTr} offset:{sl*512}')
            a(f'ds_read_u16 v{vP+8+sl}, v{vWTr} offset:{4096 + sl*512}')
    def wt_store():
        for sl in range(8):
            a(f'v_lshl_or_b32 v{vP+sl}, v{vP+8+sl}, 16, v{vP+sl}')
        a(f'buffer_store_dwordx4 {vr(vP,4)}, v{vWTo}, s[{SWT}:{SWT+3}], 0 offen')
        a(f'buffer_store_dwordx4 {vr(vP+4,4)}, v{vWTo}, s[{SWT}:{SWT+3}], 0 offen offset:16')
    prep_loads()
    if STAMP2: stamp(a, 8)
    a(f'v_and_b32 v{t0}, 15, v{vL}')
    a(f's_lshr_b32 s{sTmp}, s{sW}, 1')
    a(f's_lshl_b32 s{sTmp}, s{sTmp}, 6')
    a(f'v_add_u32 v{t1}, s{sTmp}, v{t0}')
    a(f'v_lshlrev_b32 v{t1}, 7, v{t1}')
    a(f'v_lshrrev_b32 v{t0}, 1, v{t0}')
    a(f'v_lshrrev_b32 v{t2}, 4, v{vL}')
    a(f'v_xor_b32 v{t0}, v{t0}, v{t2}')
    a(f'v_lshl_add_u32 v{vAr}, v{t0}, 4, v{t1}')
    a(f'v_xor_b32 v{vAr+1}, 64, v{vAr}')
    a(f'v_add_u32 v{vAr+2}, 0x10000, v{vAr}')
    a(f'v_add_u32 v{vAr+3}, 0x10000, v{vAr+1}')
    a(f'v_bfe_u32 v{t0}, v{vL}, 2, 2')
    a(f'v_lshl_add_u32 v{t1}, v{t2}, 3, v{t0}')
    a(f'v_lshlrev_b32 v{t1}, 7, v{t1}')
    a(f'v_add_u32 v{t1}, 98304, v{t1}')
    a(f'v_and_b32 v{vT+5}, 3, v{vL}')
    a(f'v_lshl_add_u32 v{t1}, v{vT+5}, 3, v{t1}')
    a(f'v_lshrrev_b32 v{t0}, 1, v{t0}')
    a(f'v_and_b32 v{t2}, 1, v{t2}')
    a(f'v_lshl_or_b32 v{t0}, v{t2}, 1, v{t0}')
    a(f's_and_b32 s{sTmp}, s{sW}, 1')
    a(f's_lshl_b32 s{sTmp}, s{sTmp}, 1')
    a(f'v_xor_b32 v{t0}, s{sTmp}, v{t0}')
    a(f'v_lshl_add_u32 v{vBr}, v{t0}, 5, v{t1}')
    a(f'v_xor_b32 v{vBr+1}, 32, v{vBr}')
    for i in range(64):
        a(f'v_mov_b32 v{ACC+i}, 0')

    def warm_touch():
        SPF = 36
        a(f'v_mov_b32 v{t1}, 0x7f000000')
        a(f's_cmp_eq_u32 s{sW}, 0')
        a(f's_cbranch_scc0 K1_WARM1_{warm_touch.n}')
        srd(a, SPF, 72, 73, F * D * 2)
        a(f's_mul_i32 s{sTmp}, s2, {49*128}')
        a(f'v_lshlrev_b32 v{t2}, 7, v{vL}')
        a(f'v_cmp_gt_u32 vcc, 49, v{vL}')
        a('s_nop 1')
        a(f'v_cndmask_b32 v{t2}, v{t1}, v{t2}, vcc')
        a(f'buffer_load_dword v{vT+9}, v{t2}, s[{SPF}:{SPF+3}], s{sTmp} offen')
        a(f's_branch K1_WARM_END_{warm_touch.n}')
        a.label(f'K1_WARM1_{warm_touch.n}')
        a(f's_getpc_b64 s[{SPF+4}:{SPF+5}]')
        a(f's_add_u32 s{SPF+4}, s{SPF+4}, tblG@rel32@lo+4')
        a(f's_addc_u32 s{SPF+5}, s{SPF+5}, tblG@rel32@hi+12')
        srd(a, SPF, SPF + 4, SPF + 5, 448 * 896 + 256 + 2560)
        a(f's_mul_i32 s{sTmp}, s2, {13*128}')
        a(f'v_lshlrev_b32 v{t2}, 7, v{vL}')
        a(f'v_cmp_gt_u32 vcc, 13, v{vL}')
        a(f's_cmp_eq_u32 s{sW}, 1')
        a(f's_cselect_b32 s{sTmp}, s{sTmp}, 0x7f000000')
        a(f'v_cndmask_b32 v{t2}, v{t1}, v{t2}, vcc')
        a(f'buffer_load_dword v{vT+9}, v{t2}, s[{SPF}:{SPF+3}], s{sTmp} offen')
        a.label(f'K1_WARM_END_{warm_touch.n}')
        warm_touch.n += 1
    warm_touch.n = 0
    def prep_compute():
        GWU, PR, TP = 200, 208, 216
        for j in range(4):
            a(f'v_lshlrev_b32 v{GWU+2*j}, 16, v{vGW+j}')
            a(f'v_and_b32 v{GWU+1+2*j}, 0xffff0000, v{vGW+j}')
            a(f'v_lshlrev_b32 v{PR+2*j}, 16, v{vX+j}')
            a(f'v_and_b32 v{PR+1+2*j}, 0xffff0000, v{vX+j}')
        for j in range(4):
            a(f'v_pk_mul_f32 {vr(PR+2*j,2)}, {vr(PR+2*j,2)}, {vr(GWU+2*j,2)}')
        for j in range(4):
            round_bf16_pair(a, PR + 2 * j, PR + 2 * j + 1, PR + 2 * j, PR + 2 * j + 1, TP + j)
        a(f'v_pk_add_f32 {vr(PR,2)}, {vr(PR,2)}, {vr(PR+2,2)}')
        a(f'v_pk_add_f32 {vr(PR+4,2)}, {vr(PR+4,2)}, {vr(PR+6,2)}')
        a(f'v_pk_add_f32 {vr(PR,2)}, {vr(PR,2)}, {vr(PR+4,2)}')
        g = PR
        a(f'v_add_f32 v{g}, v{PR}, v{PR+1}')
        for sh in (1, 2, 4, 8):
            a('s_nop 1')
            a(f'v_add_f32_dpp v{g}, v{g}, v{g} row_shr:{sh} row_mask:0xf bank_mask:0xf bound_ctrl:0')
        a('s_nop 1')
        a(f'v_add_f32_dpp v{g}, v{g}, v{g} row_bcast:15 row_mask:0xa bank_mask:0xf')
        a('s_nop 1')
        a(f'v_add_f32_dpp v{g}, v{g}, v{g} row_bcast:31 row_mask:0xc bank_mask:0xf')
        a(f'v_cvt_pk_bf16_f32 v{g}, v{g}, v{g}')
        a(f'v_lshlrev_b32 v{g}, 16, v{g}')
        a(f'v_mul_f32 v{g}, {hex(f32bits(-LOG2E))}, v{g}')
        a(f'v_exp_f32 v{g}, v{g}')
        a('s_nop 0')
        a(f'v_add_f32 v{g}, 1.0, v{g}')
        a(f'v_rcp_f32 v{g}, v{g}')
        a('s_nop 0')
        a(f'v_cvt_pk_bf16_f32 v{g}, v{g}, v{g}')
        a(f'v_lshlrev_b32 v{g}, 16, v{g}')
        a(f'buffer_store_dword v{g}, v{vGo}, s[{SGATE}:{SGATE+3}], 0 offen')

    def waits(step, dft):
        return [9, 6, 6, 6, 7, 1][step]

    def endstamp():
        if not STAMP: return
        a('s_waitcnt vmcnt(0)')
        stamp(a, 11)
        a('s_waitcnt lgkmcnt(0)')
        a('s_mov_b32 s75, s100')
        a('s_memrealtime s[100:101]')
        a('s_waitcnt lgkmcnt(0)')
        a('s_sub_u32 s74, s100, s75')
        a('s_add_u32 s100, s74, s76')
        stamp_flush(a, 13, sWS, sW, 2, SWR, extra=75)

    def mainloop(swapped):
        def rdA(step, h, mts=range(4)):
            slot = step % 3
            for mt in mts:
                if slot < 2:
                    a(f'ds_read_b128 {vr(AF[h]+mt*4,4)}, v{vAr+h} offset:{slot*32768 + mt*2048}')
                else:
                    a(f'ds_read_b128 {vr(AF[h]+mt*4,4)}, v{vAr+2+h} offset:{mt*2048}')
        def rdB(step, h, nts):
            slot = step % 3
            for nt in nts:
                half, t = nt >> 1, nt & 1
                for u in range(2):
                    a(f'ds_read_b64_tr_b16 {vr(BF[h]+nt*4+u*2,2)}, v{vBr+t} offset:{slot*16384 + half*8192 + h*4096 + u*512}')
        def mf(h, nt, mt):
            acc = vr(ACC + nt * 16 + mt * 4, 4)
            A_, B_ = vr(AF[h] + mt * 4, 4), vr(BF[h] + nt * 4, 4)
            if swapped:
                a(f'v_mfma_f32_16x16x32_bf16 {acc}, {B_}, {A_}, {acc}')
            else:
                a(f'v_mfma_f32_16x16x32_bf16 {acc}, {A_}, {B_}, {acc}')
        stamp(a, 1)
        a(f's_waitcnt vmcnt(9)')
        a('s_barrier')
        stamp(a, 2)
        issue_stage(2)
        rdA(0, 0); rdB(0, 0, range(4))
        fill = []
        def popfill(n=1):
            for _ in range(n):
                if fill:
                    a.emit(fill.pop(0))
        for step in range(7):
            rdA(step, 1)
            a('s_waitcnt lgkmcnt(4)')
            for nt in range(4):
                rdB(step, 1, [nt])
                for mt in range(4):
                    mf(0, nt, mt)
                    popfill(2)
            if step < 6:
                a(f's_waitcnt vmcnt({waits(step, not swapped)}) lgkmcnt(0)')
                a('s_barrier')
                if not STAMP2: stamp(a, 3 + step)
                if step == 1:
                    fill += a.capture(prep_compute)
                if step == 4:
                    fill.append('  buffer_load_dword v31, v30, s[4:7], s8 offen')
                if step == 5:
                    fill += a.capture(wt_read)
                pieces = stage_pieces(step + 3) if step + 3 <= 6 else []
                if pieces:
                    pieces.pop(0)()
                cnt = 0
                for nt in range(4):
                    rdA(step + 1, 0, [nt])
                    rdB(step + 1, 0, [nt])
                    for mt in range(4):
                        mf(1, nt, mt)
                        cnt += 1
                        if pieces and cnt in (1, 4, 6, 9, 11, 14):
                            pieces.pop(0)()
                        else:
                            popfill(2)
                assert not pieces
                if step == 3:
                    wt_dma(int(swapped))
            else:
                a('s_waitcnt lgkmcnt(0)')
                assert not fill
                fill += a.capture(wt_store)
                for nt in range(4):
                    for mt in range(4):
                        mf(1, nt, mt)
                        popfill(2)
        assert not fill, len(fill)
        a('s_nop 7')
        a('s_nop 7')
        stamp(a, 10)

    a(f's_cmp_eq_u32 s{sIsD}, 1')
    a('s_cbranch_scc1 K1_DFT')
    mainloop(True)
    vO = vT
    a(f'v_and_b32 v{t1}, 15, v{vL}')
    a(f's_lshl_b32 s{sTmp}, s{sRB}, 8')
    a(f's_lshr_b32 s{sTmp2}, s{sW}, 1')
    a(f's_lshl_b32 s{sTmp2}, s{sTmp2}, 6')
    a(f's_add_u32 s{sTmp}, s{sTmp}, s{sTmp2}')
    a(f'v_add_u32 v{t1}, s{sTmp}, v{t1}')
    a(f'v_mul_u32_u24 v{t1}, 3584, v{t1}')
    a(f'v_bfe_u32 v{t2}, v{vL}, 4, 1')
    a(f'v_lshl_add_u32 v{t1}, v{t2}, 5, v{t1}')
    a(f'v_bfe_u32 v{t2}, v{vL}, 5, 1')
    a(f'v_lshl_add_u32 v{t1}, v{t2}, 4, v{t1}')
    a(f's_lshl_b32 s{sTmp}, s{sCB}, 7')
    a(f's_and_b32 s{sTmp2}, s{sW}, 1')
    a(f's_lshl_b32 s{sTmp2}, s{sTmp2}, 6')
    a(f's_add_u32 s{sTmp}, s{sTmp}, s{sTmp2}')
    a(f'v_add_u32 v{vO}, s{sTmp}, v{t1}')
    for mt in range(4):
        a(f's_mov_b32 s{sMt+mt}, {mt*16*3584}')
    a(f's_mov_b32 s{sC}, {hex(f32bits(GC1))}')
    a(f's_mov_b32 s{sC+1}, {hex(f32bits(GC1))}')
    vC0 = vT + 3
    assert vC0 % 2 == 0
    a(f'v_mov_b32 v{vC0}, {hex(f32bits(GC0))}')
    a(f'v_mov_b32 v{vC0+1}, {hex(f32bits(GC0))}')
    for mt in range(4):
        P = 128 + mt * 4
        for t in range(2):
            G_ = ACC + t * 16 + mt * 4
            U_ = ACC + (2 + t) * 16 + mt * 4
            T = 144 + (t * 16)
            for p in range(2):
                a(f'v_pk_mul_f32 {vr(T+2*p,2)}, {vr(G_+2*p,2)}, {vr(G_+2*p,2)}')
            for p in range(2):
                a(f'v_pk_fma_f32 {vr(T+2*p,2)}, {vr(T+2*p,2)}, s[{sC}:{sC+1}], {vr(vC0,2)}')
            for p in range(2):
                a(f'v_pk_mul_f32 {vr(T+2*p,2)}, {vr(T+2*p,2)}, {vr(G_+2*p,2)}')
            for r in range(4):
                a(f'v_exp_f32 v{T+r}, v{T+r}')
            for p in range(2):
                a(f'v_pk_mul_f32 {vr(T+4+2*p,2)}, {vr(G_+2*p,2)}, {vr(U_+2*p,2)}')
            for p in range(2):
                a(f'v_pk_add_f32 {vr(T+2*p,2)}, {vr(T+2*p,2)}, 1.0 op_sel_hi:[1,0]')
            for r in range(4):
                a(f'v_rcp_f32 v{T+r}, v{T+r}')
            a('s_nop 0')
            for p in range(2):
                a(f'v_pk_mul_f32 {vr(T+4+2*p,2)}, {vr(T+4+2*p,2)}, {vr(T+2*p,2)}')
            for p in range(2):
                a(f'v_cvt_pk_bf16_f32 v{P+2*t+p}, v{T+4+2*p}, v{T+5+2*p}')
        a('s_nop 1')
        a(f'v_permlane16_swap_b32 v{P}, v{P+2}')
        a(f'v_permlane16_swap_b32 v{P+1}, v{P+3}')
        a('s_nop 1')
        a(f'buffer_store_dwordx4 {vr(P,4)}, v{vO}, s[{SO}:{SO+3}], s{sMt+mt} offen {STFLAG}')
    endstamp()
    a('s_endpgm')
    a.label('K1_DFT')
    mainloop(False)
    a('s_barrier')
    a(f's_mul_i32 s{sTmp}, s{sW}, 17408')
    a(f'v_and_b32 v{t1}, 15, v{vL}')
    a(f'v_mul_u32_u24 v{t1}, 272, v{t1}')
    a(f'v_lshrrev_b32 v{t2}, 4, v{vL}')
    a(f'v_lshl_add_u32 v{t1}, v{t2}, 4, v{t1}')
    a(f'v_add_u32 v{t1}, s{sTmp}, v{t1}')
    for nt in range(4):
        for mt in range(4):
            a(f'ds_write_b128 v{t1}, {vr(ACC+nt*16+mt*4,4)} offset:{nt*16*272 + mt*64}')
    a(f'v_mul_u32_u24 v{t0}, 272, v{t2}')
    a(f'v_and_b32 v{t1}, 15, v{vL}')
    a(f'v_lshl_add_u32 v{t0}, v{t1}, 4, v{t0}')
    a(f'v_add_u32 v{t0}, s{sTmp}, v{t0}')
    a('s_waitcnt lgkmcnt(0)')
    for j in range(16):
        a(f'ds_read_b128 {vr(ACC+j*4,4)}, v{t0} offset:{j*4*272}')
    a(f's_lshl_b32 s{sTmp}, s{sCB}, 7')
    a(f's_and_b32 s{sTmp2}, s{sW}, 1')
    a(f's_lshl_b32 s{sTmp2}, s{sTmp2}, 5')
    a(f's_add_u32 s{sTmp}, s{sTmp}, s{sTmp2}')
    a(f'v_add_u32 v{t2}, s{sTmp}, v{t2}')
    a(f'v_lshlrev_b32 v{t2}, 13, v{t2}')
    a(f'v_lshl_add_u32 v{t2}, v{t1}, 4, v{t2}')
    a(f's_lshl_b32 s{sTmp}, s{sRB}, 10')
    a(f's_lshr_b32 s{sTmp2}, s{sW}, 1')
    a(f's_lshl_b32 s{sTmp2}, s{sTmp2}, 8')
    a(f's_add_u32 s{sTmp}, s{sTmp}, s{sTmp2}')
    a(f'v_add_u32 v{t2}, s{sTmp}, v{t2}')
    for j in range(16):
        nt = j >> 2
        coff = ((nt >> 1) * 64 + (nt & 1) * 16 + (j & 3) * 4) * 8192
        a(f's_mov_b32 s{sTmp}, {coff}')
        a(f's_waitcnt lgkmcnt({15-j})')
        a(f'buffer_store_dwordx4 {vr(ACC+j*4,4)}, v{t2}, s[{SO}:{SO+3}], s{sTmp} offen {STFLAG}')
    endstamp()
    a.label('K1_END')
    a('s_endpgm')
    kernel_desc(a, name, 224)

def cp(r):
    return f'v[{r}:{r+1}]'
def PK_PLAIN(): return False
def PK_SWZ(): return False
def cadd(a, d, x, y):
    if PK_PLAIN():
        a(f'v_pk_add_f32 {cp(d)}, {cp(x)}, {cp(y)}')
    else:
        a(f'v_add_f32 v{d}, v{x}, v{y}'); a(f'v_add_f32 v{d+1}, v{x+1}, v{y+1}')
def csub(a, d, x, y):
    if PK_PLAIN():
        a(f'v_pk_add_f32 {cp(d)}, {cp(x)}, {cp(y)} neg_lo:[0,1] neg_hi:[0,1]')
    else:
        a(f'v_sub_f32 v{d}, v{x}, v{y}'); a(f'v_sub_f32 v{d+1}, v{x+1}, v{y+1}')
def caddrot(a, d, x, y, minus_i):
    if not PK_SWZ():
        if minus_i:
            a(f'v_add_f32 v{d}, v{x}, v{y+1}'); a(f'v_sub_f32 v{d+1}, v{x+1}, v{y}')
        else:
            a(f'v_sub_f32 v{d}, v{x}, v{y+1}'); a(f'v_add_f32 v{d+1}, v{x+1}, v{y}')
        return
    if minus_i:
        a(f'v_pk_add_f32 {cp(d)}, {cp(x)}, {cp(y)} op_sel:[0,1] op_sel_hi:[1,0] neg_hi:[0,1]')
    else:
        a(f'v_pk_add_f32 {cp(d)}, {cp(x)}, {cp(y)} op_sel:[0,1] op_sel_hi:[1,0] neg_lo:[0,1]')
def cfmas(a, d, x, y, sS, neg):
    if not PK_PLAIN():
        n = '-' if neg else ''
        a(f'v_fma_f32 v{d}, {n}v{y}, s{sS}, v{x}'); a(f'v_fma_f32 v{d+1}, {n}v{y+1}, s{sS}, v{x+1}')
        return
    n = ' neg_lo:[1,0,0] neg_hi:[1,0,0]' if neg else ''
    a(f'v_pk_fma_f32 {cp(d)}, {cp(y)}, s[{sS}:{sS+1}], {cp(x)}{n}')
def cfmasrot(a, d, x, y, sS, minus_i):
    if not PK_SWZ():
        if minus_i:
            a(f'v_fma_f32 v{d}, v{y+1}, s{sS}, v{x}'); a(f'v_fma_f32 v{d+1}, -v{y}, s{sS}, v{x+1}')
        else:
            a(f'v_fma_f32 v{d}, -v{y+1}, s{sS}, v{x}'); a(f'v_fma_f32 v{d+1}, v{y}, s{sS}, v{x+1}')
        return
    if minus_i:
        a(f'v_pk_fma_f32 {cp(d)}, {cp(y)}, s[{sS}:{sS+1}], {cp(x)} op_sel:[1,0,0] op_sel_hi:[0,1,1] neg_hi:[1,0,0]')
    else:
        a(f'v_pk_fma_f32 {cp(d)}, {cp(y)}, s[{sS}:{sS+1}], {cp(x)} op_sel:[1,0,0] op_sel_hi:[0,1,1] neg_lo:[1,0,0]')
def cmul1(a, t, z, w):
    if not PK_SWZ():
        a(f'v_mul_f32 v{t}, v{z}, v{w}'); a(f'v_mul_f32 v{t+1}, v{z+1}, v{w}')
        return
    a(f'v_pk_mul_f32 {cp(t)}, {cp(z)}, {cp(w)} op_sel:[0,0] op_sel_hi:[1,0]')
def cmul2(a, d, z, w, t, conj):
    if not PK_SWZ():
        if conj:
            a(f'v_fma_f32 v{d}, v{z+1}, v{w+1}, v{t}'); a(f'v_fma_f32 v{d+1}, -v{z}, v{w+1}, v{t+1}')
        else:
            a(f'v_fma_f32 v{d}, -v{z+1}, v{w+1}, v{t}'); a(f'v_fma_f32 v{d+1}, v{z}, v{w+1}, v{t+1}')
        return
    if conj:
        a(f'v_pk_fma_f32 {cp(d)}, {cp(z)}, {cp(w)}, {cp(t)} op_sel:[1,1,0] op_sel_hi:[0,1,1] neg_hi:[1,0,0]')
    else:
        a(f'v_pk_fma_f32 {cp(d)}, {cp(z)}, {cp(w)}, {cp(t)} op_sel:[1,1,0] op_sel_hi:[0,1,1] neg_lo:[1,0,0]')
def cmul(a, d, z, w, t, conj=False):
    cmul1(a, t, z, w); cmul2(a, d, z, w, t, conj)

def dft8(a, Z, Y, T, sS, fwd):
    z = lambda i: Z + 2 * i
    y = lambda i: Y + 2 * i
    mi = fwd
    for i in range(4):
        cadd(a, y(i), z(i), z(i + 4))
    for i in range(4):
        csub(a, y(i + 4), z(i), z(i + 4))
    cadd(a, z(0), y(0), y(2)); cadd(a, z(1), y(1), y(3))
    csub(a, z(2), y(0), y(2)); csub(a, z(3), y(1), y(3))
    caddrot(a, z(4), y(5), y(5), mi); caddrot(a, z(5), y(7), y(7), mi)
    caddrot(a, z(6), y(4), y(6), mi); caddrot(a, z(7), y(4), y(6), not mi)
    caddrot(a, T, z(4), z(5), mi); caddrot(a, T + 2, z(4), z(5), not mi)
    cadd(a, y(0), z(0), z(1)); csub(a, y(4), z(0), z(1))
    caddrot(a, y(2), z(2), z(3), mi); caddrot(a, y(6), z(2), z(3), not mi)
    cfmas(a, y(1), z(6), T, sS, False); cfmas(a, y(5), z(6), T, sS, True)
    cfmasrot(a, y(3), z(7), T + 2, sS, mi); cfmasrot(a, y(7), z(7), T + 2, sS, not mi)

def dft4(a, Z, Y, fwd):
    z = lambda i: Z + 2 * i
    y = lambda i: Y + 2 * i
    cadd(a, y(0), z(0), z(2)); cadd(a, y(1), z(1), z(3))
    csub(a, y(2), z(0), z(2)); csub(a, y(3), z(1), z(3))
    cadd(a, z(0), y(0), y(1)); csub(a, z(2), y(0), y(1))
    caddrot(a, z(1), y(2), y(3), fwd); caddrot(a, z(3), y(2), y(3), not fwd)

def tw_powers(a, W, T):
    w = lambda i: W + 2 * (i - 1)
    cmul(a, w(2), w(1), w(1), T)
    cmul(a, w(3), w(2), w(1), T)
    cmul(a, w(4), w(2), w(2), T)
    cmul(a, w(5), w(4), w(1), T)
    cmul(a, w(6), w(3), w(3), T)
    cmul(a, w(7), w(4), w(3), T)

N_F2 = 224
def gen_k2(a):
    name = 'k2_kernel'
    kernel_header(a, name)
    sWS, sWd = 4, 6
    sW, sTmp, sTmp2, sK = 8, 9, 10, 11
    a(f's_cmp_ge_u32 s2, {N_F2 + 225}')
    a('s_cbranch_scc1 K2_END')
    stamp_begin(a)
    a('s_load_dwordx2 s[4:5], s[0:1], 80')
    a('s_load_dwordx2 s[6:7], s[0:1], 48')
    a('s_load_dwordx2 s[40:41], s[0:1], 72')
    a('s_load_dwordx2 s[42:43], s[0:1], 64')
    a('v_lshrrev_b32 v1, 6, v0')
    a('s_nop 0')
    a(f'v_readfirstlane_b32 s{sW}, v1')
    a(f's_cmp_ge_u32 s2, 225')
    a('s_cbranch_scc1 K2_F2')
    a(f's_setprio {os.environ.get("PRIO", "3")}')
    SX, SWT2, SY, STW = 12, 16, 20, 24
    sRe, sIm, sYre, sYim = 28, 29, 30, 31
    sS = 32
    a(f's_mov_b32 s{sK}, s2')
    a('s_getpc_b64 s[34:35]')
    a('s_add_u32 s34, s34, tblTW@rel32@lo+4')
    a('s_addc_u32 s35, s35, tblTW@rel32@hi+12')
    a('s_waitcnt lgkmcnt(0)')
    srd_off(a, SX, sWS, sWS + 1, WS_X1T, 448 * 8192)
    srd_off(a, SWT2, sWS, sWS + 1, WS_WT, 225 * 8192)
    srd_off(a, SY, sWS, sWS + 1, WS_Y1T, 448 * 4096)
    srd(a, STW, 34, 35, (256 + 32 + 4) * 8)
    a(f's_mov_b32 s{sS}, {hex(f32bits(math.sqrt(0.5)))}')
    a(f's_mov_b32 s{sS+1}, {hex(f32bits(math.sqrt(0.5)))}')
    a(f's_lshl_b32 s{sRe}, s{sK}, 13')
    a(f's_add_u32 s{sIm}, s{sRe}, {224*8192}')
    a(f's_lshl_b32 s{sYre}, s{sK}, 12')
    a(f's_add_u32 s{sYim}, s{sYre}, {224*4096}')
    a(f's_cmp_eq_u32 s{sK}, 0')
    a(f's_cselect_b32 s{sIm}, 0x7f000000, s{sIm}')
    a(f's_cselect_b32 s{sYim}, 0x7f000000, s{sYim}')
    a(f's_cmp_eq_u32 s{sK}, 224')
    a(f's_cselect_b32 s{sIm}, 0x7f000000, s{sIm}')
    a(f's_cselect_b32 s{sYim}, 0x7f000000, s{sYim}')
    if 'nofft' in EXP:
        a('s_branch K2_FFT_SIG')
    Z, Y, T = 16, 32, 48
    TW1, TW2, TW3 = 64, 78, 92
    WP = 112
    vO4, vO2, v8 = 2, 3, 4
    vE1w, vE1r, vE2w, vE2r, vE3w, vE3r = 5, 6, 7, 8, 9, 10
    t0, t1 = 11, 12
    a(f'v_lshlrev_b32 v{v8}, 3, v0')
    a(f'buffer_load_dwordx2 {cp(TW1)}, v{v8}, s[{STW}:{STW+3}], 0 offen')
    a(f'v_and_b32 v{t0}, 31, v0')
    a(f'v_lshlrev_b32 v{t0}, 3, v{t0}')
    a(f'buffer_load_dwordx2 {cp(TW2)}, v{t0}, s[{STW}:{STW+3}], 0 offen offset:2048')
    a(f'v_and_b32 v{t1}, 3, v0')
    a(f'v_lshlrev_b32 v{t1}, 3, v{t1}')
    a(f'buffer_load_dwordx2 {cp(TW3)}, v{t1}, s[{STW}:{STW+3}], 0 offen offset:{2048+256}')
    a(f'v_lshlrev_b32 v{vO4}, 2, v0')
    a(f'v_add_u32 v13, 4096, v{vO4}')
    for m in range(8):
        vo = vO4 if m < 4 else 13
        a(f'buffer_load_dword v{Z+2*m}, v{vo}, s[{SX}:{SX+3}], s{sRe} offen offset:{(m&3)*1024}')
        a(f'buffer_load_dword v{Z+2*m+1}, v{vo}, s[{SX}:{SX+3}], s{sIm} offen offset:{(m&3)*1024}')
    a(f'v_lshlrev_b32 v{t0}, 5, v0')
    a(f's_lshl_b32 s{sTmp}, s{sK}, 13')
    a(f'buffer_load_dwordx4 {vr(WP,4)}, v{t0}, s[{SWT2}:{SWT2+3}], s{sTmp} offen')
    a(f'buffer_load_dwordx4 {vr(WP+4,4)}, v{t0}, s[{SWT2}:{SWT2+3}], s{sTmp} offen offset:16')
    E1, E1B, E23 = 0, 16384, 32768
    QS = 8 * 288
    a(f'v_mov_b32 v{vE1w}, v{v8}')
    a(f'v_lshrrev_b32 v{t0}, 5, v0')
    a(f'v_and_b32 v{t1}, 31, v0')
    a(f'v_lshlrev_b32 v{vE1r}, 11, v{t0}')
    a(f'v_lshl_add_u32 v{vE1r}, v{t1}, 3, v{vE1r}')
    a(f'v_mul_u32_u24 v{t0}, {QS}, v{t0}')
    a(f'v_add_u32 v{t0}, {E23}, v{t0}')
    a(f'v_lshl_add_u32 v{vE2w}, v{t1}, 3, v{t0}')
    a(f'v_bfe_u32 v{t1}, v0, 2, 3')
    a(f'v_mul_u32_u24 v{vE2r}, 288, v{t1}')
    a(f'v_add_u32 v{vE2r}, v{vE2r}, v{t0}')
    a(f'v_mul_u32_u24 v{vE3w}, 272, v{t1}')
    a(f'v_add_u32 v{vE3w}, v{vE3w}, v{t0}')
    a(f'v_and_b32 v{t1}, 3, v0')
    a(f'v_lshl_add_u32 v{vE2r}, v{t1}, 3, v{vE2r}')
    a(f'v_lshl_add_u32 v{vE3r}, v{t1}, 6, v{vE3w}')
    a(f'v_lshl_add_u32 v{vE3w}, v{t1}, 3, v{vE3w}')
    a(f'v_lshlrev_b32 v{vO2}, 1, v0')
    stamp(a, 1)
    a('s_waitcnt vmcnt(18)')
    tw_powers(a, TW1, T); tw_powers(a, TW2, T); tw_powers(a, TW3, T)
    a('s_waitcnt vmcnt(2)')
    stamp(a, 2)

    def twiddle(Rs, Rd, TWb, conj):
        a(f'v_mov_b32 v{Rd}, v{Rs}')
        a(f'v_mov_b32 v{Rd+1}, v{Rs+1}')
        for q in range(1, 8):
            cmul1(a, Rd + 2 * q, Rs + 2 * q, TWb + 2 * (q - 1))
        for q in range(1, 8):
            cmul2(a, Rd + 2 * q, Rs + 2 * q, TWb + 2 * (q - 1), Rd + 2 * q, conj)
    def wr64(addr, R, stride, base=0):
        for i in range(8):
            a(f'ds_write_b64 v{addr}, {cp(R+2*i)} offset:{base + i*stride}')
    def rd64(addr, R, stride, base=0):
        for i in range(8):
            a(f'ds_read_b64 {cp(R+2*i)}, v{addr} offset:{base + i*stride}')
    U = 120
    dft8(a, Z, Y, T, sS, True); twiddle(Y, Z, TW1, False)
    wr64(vE1w, Z, 2048, E1)
    a('s_waitcnt lgkmcnt(0)')
    a('s_barrier')
    rd64(vE1r, Z, 256, E1)
    a('s_waitcnt lgkmcnt(0)')
    stamp(a, 3)
    dft8(a, Z, Y, T, sS, True); twiddle(Y, Z, TW2, False)
    wr64(vE2w, Z, 288)
    rd64(vE2r, Z, 32)
    a('s_waitcnt lgkmcnt(0)')
    dft8(a, Z, Y, T, sS, True); twiddle(Y, Z, TW3, False)
    wr64(vE3w, Z, 32)
    for i in range(4):
        a(f'ds_read_b128 {vr(Z+4*i,4)}, v{vE3r} offset:{16*i}')
    stamp(a, 4)
    a('s_waitcnt lgkmcnt(0) vmcnt(0)')
    stamp(a, 5)
    dft4(a, Z, Y, True); dft4(a, Z + 8, Y + 8, True)
    for i in range(8):
        a(f'v_lshlrev_b32 v{U+2*i}, 16, v{WP+i}')
        a(f'v_and_b32 v{U+2*i+1}, 0xffff0000, v{WP+i}')
    for i in range(8):
        cmul1(a, Y + 2 * i, Z + 2 * i, U + 2 * i)
    for i in range(8):
        cmul2(a, Y + 2 * i, Z + 2 * i, U + 2 * i, Y + 2 * i, False)
    dft4(a, Y, Z, False); dft4(a, Y + 8, Z + 8, False)
    for i in range(4):
        a(f'ds_write_b128 v{vE3r}, {vr(Y+4*i,4)} offset:{16*i}')
    rd64(vE3w, Y, 32)
    a('s_waitcnt lgkmcnt(0)')
    twiddle(Y, Z, TW3, True); dft8(a, Z, Y, T, sS, False)
    wr64(vE2r, Y, 32)
    rd64(vE2w, Y, 288)
    a('s_waitcnt lgkmcnt(0)')
    twiddle(Y, Z, TW2, True); dft8(a, Z, Y, T, sS, False)
    wr64(vE1r, Y, 256, E1B)
    a('s_waitcnt lgkmcnt(0)')
    a('s_barrier')
    rd64(vE1w, Y, 2048, E1B)
    a('s_waitcnt lgkmcnt(0)')
    stamp(a, 6)
    twiddle(Y, Z, TW1, True); dft8(a, Z, Y, T, sS, False)
    for m in range(8):
        a(f'v_cvt_pk_bf16_f32 v{Z+m}, v{Y+2*m}, v{Y+2*m+1}')
    for m in range(8):
        a(f'ds_write_b32 v{vO4}, v{Z+m} offset:{E1 + m*1024}')
    a('s_waitcnt lgkmcnt(0)')
    a('s_barrier')
    a(f'v_lshlrev_b32 v{t0}, 5, v0')
    a(f'ds_read_b128 {vr(Y,4)}, v{t0} offset:{E1}')
    a(f'ds_read_b128 {vr(Y+4,4)}, v{t0} offset:{E1+16}')
    a(f's_mov_b32 s{sTmp}, 0x05040100')
    a(f's_mov_b32 s{sTmp2}, 0x07060302')
    a(f'v_lshlrev_b32 v{t1}, 4, v0')
    a('s_waitcnt lgkmcnt(0)')
    for j in range(4):
        a(f'v_perm_b32 v{Z+j}, v{Y+2*j+1}, v{Y+2*j}, s{sTmp}')
        a(f'v_perm_b32 v{Z+4+j}, v{Y+2*j+1}, v{Y+2*j}, s{sTmp2}')
    a(f'buffer_store_dwordx4 {vr(Z,4)}, v{t1}, s[{SY}:{SY+3}], s{sYre} offen sc1')
    a(f'buffer_store_dwordx4 {vr(Z+4,4)}, v{t1}, s[{SY}:{SY+3}], s{sYim} offen sc1')
    stamp(a, 7)
    a('s_waitcnt vmcnt(0)')
    a('s_barrier')
    a.label('K2_FFT_SIG')
    a(f's_cmp_lg_u32 s{sW}, 0')
    a('s_cbranch_scc1 K2_FFT_END')
    srd_off(a, SX, sWS, sWS + 1, WS_CNT, 4096)
    a(f'v_lshlrev_b32 v{t0}, 12, v0')
    a(f'v_mov_b32 v{t1}, 1')
    a(f's_and_b32 s{sTmp}, s{sK}, 31')
    a(f's_lshl_b32 s{sTmp}, s{sTmp}, 7')
    a(f's_lshr_b32 s{sTmp2}, s{sK}, 5')
    a(f's_lshl_b32 s{sTmp2}, s{sTmp2}, 2')
    a(f's_add_u32 s{sTmp}, s{sTmp}, s{sTmp2}')
    a(f'buffer_store_dword v{t1}, v{t0}, s[{SX}:{SX+3}], s{sTmp} offen sc1')
    a.label('K2_FFT_END')
    stamp_end(a, sWS, sW, 2, 12, 0x2100000)
    a('s_endpgm')

    a.label('K2_F2')
    if 'nogemm' in EXP:
        a('s_endpgm')
    SH, SB, SO = 12, 16, 20
    SYY, SGG, SGT, SCN = 44, 48, 52, 56
    sRB, sCB, sOffP, sOffQ, sM0, sG2, sSpin = 24, 25, 26, 27, 28, 29, 30
    a(f's_sub_u32 s{sG2}, s2, 225')
    a('s_getpc_b64 s[34:35]')
    a('s_add_u32 s34, s34, tblG@rel32@lo+4')
    a('s_addc_u32 s35, s35, tblG@rel32@hi+12')
    a(f's_and_b32 s{sRB}, s{sG2}, 7')
    a(f's_lshl_b32 s{sRB}, s{sRB}, 2')
    a(f's_lshr_b32 s{sTmp}, s{sG2}, 3')
    a(f's_and_b32 s{sTmp2}, s{sTmp}, 3')
    a(f's_add_u32 s{sRB}, s{sRB}, s{sTmp2}')
    a(f's_lshr_b32 s{sCB}, s{sTmp}, 2')
    a('s_waitcnt lgkmcnt(0)')
    srd_off(a, SH, sWS, sWS + 1, WS_H, S * F * 2)
    srd(a, SB, sWd, sWd + 1, F * D * 2)
    srd(a, SO, 42, 43, S * D * 2)
    srd_off(a, SYY, sWS, sWS + 1, WS_Y1T, 448 * 4096)
    srd(a, SGG, 34, 35, 448 * 896)
    srd_off(a, SGT, sWS, sWS + 1, WS_GATE, 2048 * 4)
    srd_off(a, SCN, sWS, sWS + 1, WS_CNT, 4096)
    vL = 1
    vPd, vQd = 2, 4
    vPr, vQr = 6, 8
    vYd, vYr = 16, 18
    vCnt, vZero, vGV = 24, 21, 22
    ACA = 144
    t0, t1, t2, t3 = 12, 13, 14, 15
    ACC = 128
    PF = [160, 192]
    QF = [176, 208]
    a(f'v_and_b32 v{vL}, 63, v0')
    a(f'v_lshrrev_b32 v{t0}, 3, v{vL}')
    a(f's_lshl_b32 s{sTmp}, s{sW}, 4')
    a(f'v_add_u32 v{t0}, s{sTmp}, v{t0}')
    a(f's_lshl_b32 s{sTmp}, s{sRB}, 6')
    a(f'v_add_u32 v{t3}, s{sTmp}, v{t0}')
    a(f'v_mul_u32_u24 v{t3}, 3584, v{t3}')
    a(f'v_lshrrev_b32 v{t1}, 4, v{vL}')
    a(f'v_and_b32 v{t2}, 7, v{vL}')
    a(f'v_xor_b32 v{t2}, v{t2}, v{t1}')
    a(f'v_lshl_add_u32 v{vPd}, v{t2}, 4, v{t3}')
    a(f'v_xor_b32 v{t2}, 4, v{t2}')
    a(f'v_lshl_add_u32 v{vPd+1}, v{t2}, 4, v{t3}')
    a(f'v_add_u32 v{vPd+1}, {8*3584}, v{vPd+1}')
    a(f'v_bfe_u32 v{t1}, v{vL}, 4, 1')
    a(f'v_bfe_u32 v{t2}, v{vL}, 1, 2')
    a(f'v_xor_b32 v{t2}, v{t2}, v{t1}')
    a(f'v_and_b32 v{t1}, 1, v{vL}')
    a(f'v_lshlrev_b32 v{t1}, 4, v{t1}')
    a(f'v_lshl_add_u32 v{t1}, v{t2}, 5, v{t1}')
    a(f'v_xor_b32 v{t2}, 64, v{t1}')
    a(f'v_mul_u32_u24 v{t3}, 896, v{t0}')
    a(f's_lshl_b32 s{sTmp}, s{sCB}, 7')
    a(f'v_add_u32 v{t3}, s{sTmp}, v{t3}')
    a(f'v_add_u32 v{vQd}, v{t3}, v{t1}')
    a(f'v_add_u32 v{vQd+1}, v{t3}, v{t2}')
    a(f'v_add_u32 v{vQd+1}, {8*896}, v{vQd+1}')
    a(f'v_lshlrev_b32 v{t3}, 12, v{t0}')
    a(f's_lshl_b32 s{sTmp}, s{sRB}, 7')
    a(f'v_add_u32 v{t3}, s{sTmp}, v{t3}')
    a(f'v_add_u32 v{vYd}, v{t3}, v{t1}')
    a(f'v_add_u32 v{vYd+1}, v{t3}, v{t2}')
    a(f'v_add_u32 v{vYd+1}, {8*4096}, v{vYd+1}')
    a(f'v_lshrrev_b32 v{vZero}, 1, v{vL}')
    a(f'v_lshlrev_b32 v{vZero}, 7, v{vZero}')
    a(f'v_and_b32 v{vCnt}, 1, v{vL}')
    a(f'v_lshl_add_u32 v{vZero}, v{vCnt}, 4, v{vZero}')
    a(f's_lshl_b32 s{sM0}, s{sW}, 11')
    NB = 28
    NST = 35
    def pieces(st):
        slot = st % 4
        def mk(part, jj):
            def f():
                if part == 0:
                    a(f's_mov_b32 s{sOffP}, {st*128 if st < NB else (st-NB)*64*4096}')
                    a(f's_add_u32 m0, s{sM0}, {slot*16384 + jj*1024}')
                    a('s_nop 0')
                    if st < NB:
                        a(f'buffer_load_dwordx4 v{vPd+jj}, s[{SH}:{SH+3}], s{sOffP} offen lds')
                    else:
                        a(f'buffer_load_dwordx4 v{vYd+jj}, s[{SYY}:{SYY+3}], s{sOffP} offen lds')
                else:
                    a(f's_mov_b32 s{sOffQ}, {(st if st < NB else st-NB)*64*896}')
                    a(f's_add_u32 m0, s{sM0}, {slot*16384 + 8192 + jj*1024}')
                    a('s_nop 0')
                    sq = SB if st < NB else SGG
                    a(f'buffer_load_dwordx4 v{vQd+jj}, s[{sq}:{sq+3}], s{sOffQ} offen lds')
            return f
        if 'nodma' in EXP: return []
        return [mk(0, 0), mk(1, 0), mk(0, 1), mk(1, 1)]
    a(f'v_and_b32 v{vGV}, 15, v{vL}')
    a(f's_lshl_b32 s{sTmp}, s{sRB}, 6')
    a(f's_lshr_b32 s{sTmp2}, s{sW}, 1')
    a(f's_lshl_b32 s{sTmp2}, s{sTmp2}, 5')
    a(f's_add_u32 s{sTmp}, s{sTmp}, s{sTmp2}')
    a(f'v_add_lshl_u32 v{vCnt}, v{vGV}, s{sTmp}, 2')
    a(f'buffer_load_dword v{vGV}, v{vCnt}, s[{SGT}:{SGT+3}], 0 offen')
    a(f'buffer_load_dword v{vGV+1}, v{vCnt}, s[{SGT}:{SGT+3}], 0 offen offset:64')
    for st in range(4):
        for f in pieces(st):
            f()
    a(f'v_and_b32 v{t0}, 15, v{vL}')
    a(f's_lshr_b32 s{sTmp}, s{sW}, 1')
    a(f's_lshl_b32 s{sTmp}, s{sTmp}, 5')
    a(f'v_add_u32 v{t1}, s{sTmp}, v{t0}')
    a(f'v_lshlrev_b32 v{t1}, 7, v{t1}')
    a(f'v_lshrrev_b32 v{t0}, 1, v{t0}')
    a(f'v_lshrrev_b32 v{t2}, 4, v{vL}')
    a(f'v_xor_b32 v{t0}, v{t0}, v{t2}')
    a(f'v_lshl_add_u32 v{vPr}, v{t0}, 4, v{t1}')
    a(f'v_xor_b32 v{vPr+1}, 64, v{vPr}')
    a(f'v_bfe_u32 v{t0}, v{vL}, 2, 2')
    a(f'v_lshl_add_u32 v{t1}, v{t2}, 3, v{t0}')
    a(f'v_lshlrev_b32 v{t1}, 7, v{t1}')
    a(f'v_and_b32 v{t3}, 3, v{vL}')
    a(f'v_lshl_add_u32 v{t1}, v{t3}, 3, v{t1}')
    a(f'v_lshrrev_b32 v{t0}, 1, v{t0}')
    a(f'v_and_b32 v{t2}, 1, v{t2}')
    a(f'v_lshl_or_b32 v{t0}, v{t2}, 1, v{t0}')
    a(f's_and_b32 s{sTmp}, s{sW}, 1')
    a(f's_lshl_b32 s{sTmp}, s{sTmp}, 1')
    a(f'v_xor_b32 v{t2}, s{sTmp}, v{t0}')
    a(f'v_lshl_add_u32 v{vQr}, v{t2}, 5, v{t1}')
    a(f'v_add_u32 v{vQr}, 8192, v{vQr}')
    a(f'v_xor_b32 v{vQr+1}, 32, v{vQr}')
    a(f's_and_b32 s{sTmp}, s{sW}, 2')
    a(f'v_xor_b32 v{t2}, s{sTmp}, v{t0}')
    a(f'v_lshl_add_u32 v{vYr}, v{t2}, 5, v{t1}')
    a(f'v_xor_b32 v{vYr+1}, 32, v{vYr}')
    for i in range(32):
        a(f'v_mov_b32 v{ACC+i}, 0')
    def reads(st):
        off = (st % 4) * 16384
        R = []
        for h in range(2):
            for mt in range(2):
                if st < NB:
                    R.append(lambda h=h, mt=mt: a(f'ds_read_b128 {vr(PF[st&1]+h*8+mt*4,4)}, v{vPr+h} offset:{off + mt*2048}'))
                else:
                    for u in range(2):
                        R.append(lambda h=h, mt=mt, u=u: a(f'ds_read_b64_tr_b16 {vr(PF[st&1]+h*8+mt*4+u*2,2)}, v{vYr+mt} offset:{off + h*4096 + u*512}'))
            for nt in range(2):
                for u in range(2):
                    R.append(lambda h=h, nt=nt, u=u: a(f'ds_read_b64_tr_b16 {vr(QF[st&1]+h*8+nt*4+u*2,2)}, v{vQr+nt} offset:{off + h*4096 + u*512}'))
        if 'nolds' in EXP: return []
        return R
    stamp(a, 1)
    a('s_waitcnt vmcnt(12)')
    a('s_barrier')
    for f in reads(0):
        f()
    GOFF = [j * 8192 for j in range(6)] + [65536]
    YOFF = [49152, 57344, 73728]
    def gpieces(js):
        out = []
        for j in js:
            for jj in range(2):
                def f(j=j, jj=jj):
                    a(f's_mov_b32 s{sOffQ}, {j*64*896}')
                    a(f's_add_u32 m0, s{sM0}, {GOFF[j] + jj*1024}')
                    a('s_nop 0')
                    a(f'buffer_load_dwordx4 v{vQd+jj}, s[{SGG}:{SGG+3}], s{sOffQ} offen lds')
                out.append(f)
        return out
    def phase(first, last, AB, stampbase):
        for st in range(first, last + 1):
            rem = 2
            extra = 0
            if st + 1 <= last:
                a(f's_waitcnt vmcnt({4*rem + extra}) lgkmcnt(0)')
                a('s_barrier')
            else:
                a('s_waitcnt lgkmcnt(0)')
            if first == 0 and st % 4 == 0: stamp(a, 2 + st // 4)
            if st + 4 <= last:
                dm = pieces(st + 4)
            elif st + 1 <= last:
                g0 = 2 * (st + 4 - last - 1)
                dm = gpieces([g0, g0 + 1])
            else:
                dm = []
            rd = reads(st + 1) if st + 1 <= last else []
            for h in range(2):
                for mt in range(2):
                    for nt in range(2):
                        for _ in range(2):
                            if rd: rd.pop(0)()
                        acc = vr(AB + mt * 8 + nt * 4, 4)
                        a(f'v_mfma_f32_16x16x32_bf16 {acc}, {vr(QF[st&1]+h*8+nt*4,4)}, {vr(PF[st&1]+h*8+mt*4,4)}, {acc}')
                        if dm and nt == 1:
                            dm.pop(0)()
            while rd: rd.pop(0)()
            if st == NB - 5:
                for f in gpieces([6]):
                    f()
            if first == 0 and st == POLL:
                a(f'buffer_load_dwordx4 {vr(vCnt,4)}, v{vZero}, s[{SCN}:{SCN+3}], 0 offen sc1')
    POLL = NB - 3
    phase(0, NB - 1, ACC, 2)
    for i in range(2):
        a(f'v_subrev_u32 v{vQr+i}, 8192, v{vQr+i}')
        a(f'v_add_u32 v{vYr+i}, {YOFF[0]}, v{vYr+i}')
        a(f'v_add_u32 v{28+i}, 65536, v{vQr+i}')
    a(f's_mov_b32 s{sSpin}, 0')
    a(f's_cmp_lg_u32 s{sW}, 0')
    a('s_cbranch_scc1 K2_GO')
    a('s_waitcnt vmcnt(4)')
    a.label('K2_SPIN')
    a(f'v_and_b32 v{vCnt}, v{vCnt}, v{vCnt+1}')
    a(f'v_and_b32 v{vCnt+2}, v{vCnt+2}, v{vCnt+3}')
    a(f'v_and_b32 v{vCnt}, v{vCnt}, v{vCnt+2}')
    a(f'v_cmp_ne_u32 vcc, 0, v{vCnt}')
    a('s_nop 4')
    a('s_cmp_eq_u64 vcc, -1')
    a('s_cbranch_scc1 K2_GO')
    a(f's_add_u32 s{sSpin}, s{sSpin}, 1')
    a(f's_cmp_ge_u32 s{sSpin}, 0x20000')
    a('s_cbranch_scc1 K2_GO')
    a('s_sleep 2')
    a(f'buffer_load_dwordx4 {vr(vCnt,4)}, v{vZero}, s[{SCN}:{SCN+3}], 0 offen sc1')
    a('s_waitcnt vmcnt(0)')
    a('s_branch K2_SPIN')
    a.label('K2_GO')
    a('s_barrier')
    stamp(a, 8)
    def ydma(j):
        a(f's_mov_b32 s{sOffP}, {j*64*4096}')
        for jj in range(2):
            a(f's_add_u32 m0, s{sM0}, {YOFF[j%3] + jj*1024}')
            a('s_nop 0')
            a(f'buffer_load_dwordx4 v{vYd+jj}, s[{SYY}:{SYY+3}], s{sOffP} offen lds')
    def areads(j):
        R = []
        for h in range(2):
            for t in range(2):
                for u in range(2):
                    R.append(lambda h=h, t=t, u=u: a(f'ds_read_b64_tr_b16 {vr(PF[j&1]+h*8+t*4+u*2,2)}, v{vYr+t} offset:{YOFF[j%3] - YOFF[0] + h*4096 + u*512}'))
                    R.append(lambda h=h, t=t, u=u: a(f'ds_read_b64_tr_b16 {vr(QF[j&1]+h*8+t*4+u*2,2)}, v{(vQr+t) if j < 6 else (28+t)} offset:{(j*8192 if j < 6 else 0) + h*4096 + u*512}'))
        return R
    for j in range(3):
        ydma(j)
    a('s_waitcnt vmcnt(4)')
    a('s_barrier')
    for f in areads(0):
        f()
    for j in range(7):
        if j + 1 < 7:
            rem = min(6, j + 2) - (j + 1)
            a(f's_waitcnt vmcnt({2*rem}) lgkmcnt(0)')
            a('s_barrier')
            if j + 3 < 7:
                ydma(j + 3)
        else:
            a('s_waitcnt lgkmcnt(0)')
        rd = areads(j + 1) if j + 1 < 7 else []
        for h in range(2):
            for mt in range(2):
                for nt in range(2):
                    for _ in range(2):
                        if rd: rd.pop(0)()
                    acc = vr(ACA + mt * 8 + nt * 4, 4)
                    a(f'v_mfma_f32_16x16x32_bf16 {acc}, {vr(QF[j&1]+h*8+nt*4,4)}, {vr(PF[j&1]+h*8+mt*4,4)}, {acc}')
        while rd: rd.pop(0)()
    stamp(a, 9)
    a(f'v_and_b32 v{t1}, 15, v{vL}')
    a(f's_lshl_b32 s{sTmp}, s{sRB}, 6')
    a(f's_lshr_b32 s{sTmp2}, s{sW}, 1')
    a(f's_lshl_b32 s{sTmp2}, s{sTmp2}, 5')
    a(f's_add_u32 s{sTmp}, s{sTmp}, s{sTmp2}')
    a(f'v_add_u32 v{t1}, s{sTmp}, v{t1}')
    a(f'v_mul_u32_u24 v{t1}, 896, v{t1}')
    a(f'v_bfe_u32 v{t2}, v{vL}, 4, 1')
    a(f'v_lshl_add_u32 v{t1}, v{t2}, 5, v{t1}')
    a(f'v_bfe_u32 v{t2}, v{vL}, 5, 1')
    a(f'v_lshl_add_u32 v{t1}, v{t2}, 4, v{t1}')
    a(f's_lshl_b32 s{sTmp}, s{sCB}, 7')
    a(f's_and_b32 s{sTmp2}, s{sW}, 1')
    a(f's_lshl_b32 s{sTmp2}, s{sTmp2}, 6')
    a(f's_add_u32 s{sTmp}, s{sTmp}, s{sTmp2}')
    a(f's_add_u32 s{sTmp2}, s{sTmp}, {16*896}')
    a('s_nop 4')
    P = 160
    for mt in range(2):
        a(f'v_sub_f32 v{30+mt}, 1.0, v{vGV+mt}')
        for i in range(8):
            a(f'v_mul_f32 v{ACC+mt*8+i}, v{30+mt}, v{ACC+mt*8+i}')
        for i in range(8):
            a(f'v_fma_f32 v{ACA+mt*8+i}, v{ACA+mt*8+i}, v{vGV+mt}, v{ACC+mt*8+i}')
        for nt in range(2):
            a(f'v_cvt_pk_bf16_f32 v{P+4*mt+2*nt}, v{ACA+mt*8+nt*4}, v{ACA+mt*8+nt*4+1}')
            a(f'v_cvt_pk_bf16_f32 v{P+4*mt+2*nt+1}, v{ACA+mt*8+nt*4+2}, v{ACA+mt*8+nt*4+3}')
    a('s_nop 1')
    for mt in range(2):
        a(f'v_permlane16_swap_b32 v{P+4*mt}, v{P+4*mt+2}')
        a(f'v_permlane16_swap_b32 v{P+4*mt+1}, v{P+4*mt+3}')
    a('s_nop 1')
    a(f'buffer_store_dwordx4 {vr(P,4)}, v{t1}, s[{SO}:{SO+3}], s{sTmp} offen')
    a(f'buffer_store_dwordx4 {vr(P+4,4)}, v{t1}, s[{SO}:{SO+3}], s{sTmp2} offen')
    stamp(a, 10)
    stamp_end(a, sWS, sW, 2, 12, 0x2100000)
    a.label('K2_END')
    a('s_endpgm')
    kernel_desc(a, name, 224)

def gen_k3(a):
    name = 'k3_kernel'
    kernel_header(a, name)
    sWS, sOut = 4, 6
    sW, sTmp, sTmp2, sRB, sCB, sOffY, sOffG, sM0 = 8, 9, 10, 11, 36, 37, 38, 39
    SY, SG, SBb, SGT, SO = 12, 16, 20, 24, 28
    a('s_cmp_ge_u32 s2, 224')
    a('s_cbranch_scc1 K3_END')
    stamp_begin(a)
    a('s_load_dwordx2 s[4:5], s[0:1], 80')
    a('s_load_dwordx2 s[6:7], s[0:1], 64')
    a('v_lshrrev_b32 v1, 6, v0')
    a('s_nop 0')
    a(f'v_readfirstlane_b32 s{sW}, v1')
    a(f's_and_b32 s{sRB}, s2, 7')
    a(f's_lshl_b32 s{sRB}, s{sRB}, 2')
    a(f's_lshr_b32 s{sTmp}, s2, 3')
    a(f's_and_b32 s{sTmp2}, s{sTmp}, 3')
    a(f's_add_u32 s{sRB}, s{sRB}, s{sTmp2}')
    a(f's_lshr_b32 s{sCB}, s{sTmp}, 2')
    a('s_getpc_b64 s[34:35]')
    a('s_add_u32 s34, s34, tblG@rel32@lo+4')
    a('s_addc_u32 s35, s35, tblG@rel32@hi+12')
    a('s_waitcnt lgkmcnt(0)')
    srd_off(a, SY, sWS, sWS + 1, WS_Y1T, 448 * 4096)
    srd(a, SG, 34, 35, 448 * 896)
    srd_off(a, SBb, sWS, sWS + 1, WS_B, S * D * 2)
    srd_off(a, SGT, sWS, sWS + 1, WS_GATE, 2048 * 4)
    srd(a, SO, sOut, sOut + 1, S * D * 2)
    vL = 1
    vYd, vGd = 2, 4
    vYr, vGr = 6, 8
    vO, vGo = 10, 11
    t0, t1, t2, t3 = 12, 13, 14, 15
    ACC = 32
    YF = [48, 56]
    GF = [64, 72]
    BV = 80
    GV = 88
    a(f'v_and_b32 v{vL}, 63, v0')
    a(f'v_lshrrev_b32 v{t0}, 3, v{vL}')
    a(f's_lshl_b32 s{sTmp}, s{sW}, 4')
    a(f'v_add_u32 v{t0}, s{sTmp}, v{t0}')
    a(f'v_bfe_u32 v{t1}, v{vL}, 4, 1')
    a(f'v_bfe_u32 v{t2}, v{vL}, 1, 2')
    a(f'v_xor_b32 v{t2}, v{t2}, v{t1}')
    a(f'v_and_b32 v{t1}, 1, v{vL}')
    a(f'v_lshlrev_b32 v{t1}, 4, v{t1}')
    a(f'v_lshl_add_u32 v{t1}, v{t2}, 5, v{t1}')
    a(f'v_xor_b32 v{t2}, 64, v{t1}')
    a(f'v_lshlrev_b32 v{t3}, 12, v{t0}')
    a(f's_lshl_b32 s{sTmp}, s{sRB}, 7')
    a(f'v_add_u32 v{t3}, s{sTmp}, v{t3}')
    a(f'v_add_u32 v{vYd}, v{t3}, v{t1}')
    a(f'v_add_u32 v{vYd+1}, v{t3}, v{t2}')
    a(f'v_add_u32 v{vYd+1}, {8*4096}, v{vYd+1}')
    a(f'v_mul_u32_u24 v{t3}, 896, v{t0}')
    a(f's_lshl_b32 s{sTmp}, s{sCB}, 7')
    a(f'v_add_u32 v{t3}, s{sTmp}, v{t3}')
    a(f'v_add_u32 v{vGd}, v{t3}, v{t1}')
    a(f'v_add_u32 v{vGd+1}, v{t3}, v{t2}')
    a(f'v_add_u32 v{vGd+1}, {8*896}, v{vGd+1}')
    a(f's_lshl_b32 s{sM0}, s{sW}, 11')
    for st in range(7):
        a(f's_mov_b32 s{sOffY}, {st*64*4096}')
        a(f's_mov_b32 s{sOffG}, {st*64*896}')
        for j in range(2):
            a(f's_add_u32 m0, s{sM0}, {st*16384 + j*1024}')
            a('s_nop 0')
            a(f'buffer_load_dwordx4 v{vYd+j}, s[{SY}:{SY+3}], s{sOffY} offen lds')
            a(f's_add_u32 m0, s{sM0}, {st*16384 + 8192 + j*1024}')
            a('s_nop 0')
            a(f'buffer_load_dwordx4 v{vGd+j}, s[{SG}:{SG+3}], s{sOffG} offen lds')
    a(f'v_and_b32 v{t1}, 15, v{vL}')
    a(f's_lshl_b32 s{sTmp}, s{sRB}, 6')
    a(f's_lshr_b32 s{sTmp2}, s{sW}, 1')
    a(f's_lshl_b32 s{sTmp2}, s{sTmp2}, 5')
    a(f's_add_u32 s{sTmp}, s{sTmp}, s{sTmp2}')
    a(f'v_add_u32 v{t1}, s{sTmp}, v{t1}')
    a(f'v_lshlrev_b32 v{vGo}, 2, v{t1}')
    a(f'v_mul_u32_u24 v{t1}, 896, v{t1}')
    a(f'v_bfe_u32 v{t2}, v{vL}, 4, 1')
    a(f'v_lshl_add_u32 v{t1}, v{t2}, 5, v{t1}')
    a(f'v_bfe_u32 v{t2}, v{vL}, 5, 1')
    a(f'v_lshl_add_u32 v{t1}, v{t2}, 4, v{t1}')
    a(f's_lshl_b32 s{sTmp}, s{sCB}, 7')
    a(f's_and_b32 s{sTmp2}, s{sW}, 1')
    a(f's_lshl_b32 s{sTmp2}, s{sTmp2}, 6')
    a(f's_add_u32 s{sTmp}, s{sTmp}, s{sTmp2}')
    a(f'v_add_u32 v{vO}, s{sTmp}, v{t1}')
    a(f's_mov_b32 s{sOffY}, {16*896}')
    a(f'buffer_load_dwordx4 {vr(BV,4)}, v{vO}, s[{SBb}:{SBb+3}], 0 offen')
    a(f'buffer_load_dwordx4 {vr(BV+4,4)}, v{vO}, s[{SBb}:{SBb+3}], s{sOffY} offen')
    a(f'buffer_load_dword v{GV}, v{vGo}, s[{SGT}:{SGT+3}], 0 offen')
    a(f'buffer_load_dword v{GV+1}, v{vGo}, s[{SGT}:{SGT+3}], 0 offen offset:64')
    NE = 4
    a(f'v_lshrrev_b32 v{t2}, 4, v{vL}')
    a(f'v_bfe_u32 v{t0}, v{vL}, 2, 2')
    a(f'v_lshl_add_u32 v{t1}, v{t2}, 3, v{t0}')
    a(f'v_lshlrev_b32 v{t1}, 7, v{t1}')
    a(f'v_and_b32 v{t3}, 3, v{vL}')
    a(f'v_lshl_add_u32 v{t1}, v{t3}, 3, v{t1}')
    a(f'v_lshrrev_b32 v{t0}, 1, v{t0}')
    a(f'v_and_b32 v{t2}, 1, v{t2}')
    a(f'v_lshl_or_b32 v{t0}, v{t2}, 1, v{t0}')
    a(f's_and_b32 s{sTmp}, s{sW}, 2')
    a(f'v_xor_b32 v{t2}, s{sTmp}, v{t0}')
    a(f'v_lshl_add_u32 v{vYr}, v{t2}, 5, v{t1}')
    a(f'v_xor_b32 v{vYr+1}, 32, v{vYr}')
    a(f's_and_b32 s{sTmp}, s{sW}, 1')
    a(f's_lshl_b32 s{sTmp}, s{sTmp}, 1')
    a(f'v_xor_b32 v{t2}, s{sTmp}, v{t0}')
    a(f'v_lshl_add_u32 v{vGr}, v{t2}, 5, v{t1}')
    a(f'v_add_u32 v{vGr}, 8192, v{vGr}')
    a(f'v_xor_b32 v{vGr+1}, 32, v{vGr}')
    vYr2, vGr2 = 16, 18
    for i in range(2):
        a(f'v_add_u32 v{vYr2+i}, 0x10000, v{vYr+i}')
        a(f'v_add_u32 v{vGr2+i}, 0x10000, v{vGr+i}')
    for i in range(16):
        a(f'v_mov_b32 v{ACC+i}, 0')
    stamp(a, 1)
    for st in range(7):
        a(f's_waitcnt vmcnt({(6-st)*4 + NE})')
        a('s_barrier')
        stamp(a, 2 + st)
        yb, gb, off = (vYr, vGr, st * 16384) if st < 4 else (vYr2, vGr2, (st - 4) * 16384)
        for h in range(2):
            for t in range(2):
                for u in range(2):
                    a(f'ds_read_b64_tr_b16 {vr(YF[h]+t*4+u*2,2)}, v{yb+t} offset:{off + h*4096 + u*512}')
                    a(f'ds_read_b64_tr_b16 {vr(GF[h]+t*4+u*2,2)}, v{gb+t} offset:{off + h*4096 + u*512}')
        for h in range(2):
            a(f's_waitcnt lgkmcnt({8 if h == 0 else 0})')
            for mt in range(2):
                for nt in range(2):
                    acc = vr(ACC + mt * 8 + nt * 4, 4)
                    a(f'v_mfma_f32_16x16x32_bf16 {acc}, {vr(GF[h]+nt*4,4)}, {vr(YF[h]+mt*4,4)}, {acc}')
    stamp(a, 9)
    a('s_waitcnt vmcnt(0)')
    a('s_nop 7')
    for mt in range(2):
        for r in range(4):
            a(f'v_permlane16_swap_b32 v{ACC+mt*8+r}, v{ACC+mt*8+4+r}')
    OM = 90
    for mt in range(2):
        a(f'v_sub_f32 v{OM+mt}, 1.0, v{GV+mt}')
    a(f'v_cvt_pk_bf16_f32 v{t0}, v{OM}, v{OM+1}')
    a(f'v_lshlrev_b32 v{OM}, 16, v{t0}')
    a(f'v_and_b32 v{OM+1}, 0xffff0000, v{t0}')
    T = 48
    for mt in range(2):
        A_ = ACC + mt * 8
        P = 92 + mt * 4
        G2, O2 = 100 + mt * 4, 102 + mt * 4
        a(f'v_mov_b32 v{G2}, v{GV+mt}'); a(f'v_mov_b32 v{G2+1}, v{GV+mt}')
        a(f'v_mov_b32 v{O2}, v{OM+mt}'); a(f'v_mov_b32 v{O2+1}, v{OM+mt}')
        for p in range(4):
            round_bf16_pair(a, A_ + 2 * p, A_ + 2 * p + 1, A_ + 2 * p, A_ + 2 * p + 1, T + p)
        for p in range(4):
            a(f'v_pk_mul_f32 {cp(A_+2*p)}, {cp(A_+2*p)}, {cp(G2)}')
        for p in range(4):
            round_bf16_pair(a, A_ + 2 * p, A_ + 2 * p + 1, A_ + 2 * p, A_ + 2 * p + 1, T + p)
        for p in range(4):
            a(f'v_lshlrev_b32 v{T+8+2*p}, 16, v{BV+mt*4+p}')
            a(f'v_and_b32 v{T+9+2*p}, 0xffff0000, v{BV+mt*4+p}')
        for p in range(4):
            a(f'v_pk_mul_f32 {cp(T+8+2*p)}, {cp(T+8+2*p)}, {cp(O2)}')
        for p in range(4):
            round_bf16_pair(a, T + 8 + 2 * p, T + 9 + 2 * p, T + 8 + 2 * p, T + 9 + 2 * p, T + p)
        for p in range(4):
            a(f'v_pk_add_f32 {cp(A_+2*p)}, {cp(A_+2*p)}, {cp(T+8+2*p)}')
        for p in range(4):
            a(f'v_cvt_pk_bf16_f32 v{P+p}, v{A_+2*p}, v{A_+2*p+1}')
        if mt == 0:
            a(f'buffer_store_dwordx4 {vr(P,4)}, v{vO}, s[{SO}:{SO+3}], 0 offen')
        else:
            a(f'buffer_store_dwordx4 {vr(P,4)}, v{vO}, s[{SO}:{SO+3}], s{sOffY} offen')
    stamp(a, 10)
    stamp_end(a, sWS, sW, 2, 12, 0x2200000)
    a.label('K3_END')
    a('s_endpgm')
    kernel_desc(a, name, 112)

def gen_tables(a):
    a.raw('.altmacro')
    for i in range(448):
        c = math.cos(2 * math.pi * i / 448); s = math.sin(2 * math.pi * i / 448)
        if i % 112 == 0:
            c = [1.0, 0.0, -1.0, 0.0][i // 112]; s = [0.0, 1.0, 0.0, -1.0][i // 112]
        sc = 1.0 / (448 * 2048)
        a.raw(f'.set CF_{i}, {bf16bits(c)}')
        a.raw(f'.set SF_{i}, {bf16bits(-s)}')
        a.raw(f'.set CG1_{i}, {bf16bits(c*sc)}')
        a.raw(f'.set CG2_{i}, {bf16bits(2*c*sc)}')
        a.raw(f'.set SG_{i}, {bf16bits(-2*s*sc)}')
    for n in ('CF', 'SF', 'CG1', 'CG2', 'SG'):
        a.raw(f'.macro em{n} idx')
        a.raw(f'  .short {n}_\\idx')
        a.raw('.endm')
    a.raw('.section .rodata,"a"')
    a.raw('.p2align 8')
    a.raw('.type tblF,@object')
    a.label('tblF')
    a.raw('''.set td, 0
.rept 448
  .set tc, 0
  .rept 225
    emCF %((td*tc)%448)
    .set tc, tc+1
  .endr
  .set tc, 1
  .rept 223
    emSF %((td*tc)%448)
    .set tc, tc+1
  .endr
  .fill 64, 2, 0
  .set td, td+1
.endr''')
    a.raw('.p2align 8')
    a.raw('.type tblG,@object')
    a.label('tblG')
    a.raw('''.set td, 0
.rept 448
  emCG1 0
.endr
.set tc, 1
.rept 223
  .set td, 0
  .rept 448
    emCG2 %((td*tc)%448)
    .set td, td+1
  .endr
  .set tc, tc+1
.endr
.set td, 0
.rept 448
  emCG1 %((td*224)%448)
  .set td, td+1
.endr
.set tc, 1
.rept 223
  .set td, 0
  .rept 448
    emSG %((td*tc)%448)
    .set td, td+1
  .endr
  .set tc, tc+1
.endr''')

def gen_tw(a):
    a.raw('.p2align 8')
    a.raw('.type tblTW,@object')
    a.label('tblTW')
    def ent(n, N):
        an = -2 * math.pi * n / N
        return f32bits(math.cos(an)), f32bits(math.sin(an))
    vals = [ent(T, 2048) for T in range(256)] + [ent(j, 256) for j in range(32)] + [ent(j, 32) for j in range(4)]
    for i in range(0, len(vals), 4):
        a.raw('  .long ' + ', '.join(f'{hex(x)}, {hex(y)}' for x, y in vals[i:i+4]))

HEADER = open('cdna_kernels/' + NAME + '.s.ref').read().split('; Override launch')[0]

def main(out):
    a = Asm()
    a.raw(HEADER.rstrip('\n'))
    launches = [('k1_kernel', (256, 1, 1), (512, 1, 1), 147456 + 8192),
                ('k2_kernel', (N_F2 + 225, 1, 1), (256, 1, 1), 81920)]
    for k, g, b, l in launches:
        a.raw(f'; @launch kernel={k} grid=({g[0]},{g[1]},{g[2]}) block=({b[0]},{b[1]},{b[2]}) lds={l}')
    a.raw('.amdgcn_target "amdgcn-amd-amdhsa--gfx950"')
    gen_k1(a)
    gen_k2(a)
    gen_tables(a)
    gen_tw(a)
    open(out, 'w').write('\n'.join(a.L) + '\n')

if __name__ == '__main__':
    if len(sys.argv) > 2 and sys.argv[2].startswith('stamp'): STAMP = True
    if len(sys.argv) > 2 and sys.argv[2] == 'stamp2': STAMP2 = True
    main(sys.argv[1] if len(sys.argv) > 1 else 'k.s')
```
